```python
import torch

def _softmax(x, axis=-1):
    return torch.softmax(x, dim=axis)
def _gelu(x):
    return torch.nn.functional.gelu(x, approximate="tanh")
def _silu(x):
    return torch.nn.functional.silu(x)
def _sigmoid(x):
    return torch.sigmoid(x)
def _layernorm(x, axis=-1, eps=1e-5):
    m = x.mean(dim=axis, keepdim=True)
    v = x.var(dim=axis, keepdim=True, unbiased=False)
    return (x - m) / torch.sqrt(v + eps)
def _scatter_add(tgt, idx, src, axis=0):
    return tgt.clone().index_add_(axis, idx, src)
def _segment_sum(src, seg, n):
    out = torch.zeros((n,) + src.shape[1:], dtype=src.dtype)
    return out.index_add_(0, seg, src)
def _pad(x, pw):
    flat = tuple(v for pair in reversed(pw) for v in pair)
    return torch.nn.functional.pad(x, flat)

kernel_name = 'interleave_layers__sliding_block_cached__dense_activation_mish__decode'

def setup_inputs():

    _w = (lambda a: (lambda t: t.to(torch.bfloat16) if t.is_floating_point() else t)(torch.as_tensor(a)))
    def _A_setup():
        B, Sq, D = 1, 1, 576
        Hq, Hkv, Sk, Dh = 32, 16, 32768, 128
        assert Hq % Hkv == 0, (Hq, Hkv)
        return {
            "x": _w((lambda *s: torch.randn(*s, dtype=torch.bfloat16) * 0.05)(B, Sq, D)),
            "k_cache": _w((lambda *s: torch.randn(*s, dtype=torch.bfloat16) * 1.6)(B, Hkv, Sk, Dh)),
            "v_cache": _w((lambda *s: torch.randn(*s, dtype=torch.bfloat16) * 1.6)(B, Hkv, Sk, Dh)),
            "wq": _w((lambda *s: torch.randn(*s, dtype=torch.bfloat16) * 1.6)(D, Hq * Dh) * (D ** -0.5)),
            "wo": _w((lambda *s: torch.randn(*s, dtype=torch.bfloat16) * 1.6)(Hq * Dh, D) * ((Hq * Dh) ** -0.5)),
        }
    _A_in = _A_setup()

    def _B_setup():
        B, S, D, F = 1, 1, 576, 4608
        return {
            "x": _w((lambda *s: torch.randn(*s, dtype=torch.bfloat16) * 0.05)(B, S, D)),
            "w1": _w((lambda *s: torch.randn(*s, dtype=torch.bfloat16) * 0.8)(D, F) * (D ** -0.5)),
            "b1": _w((lambda *s: torch.randn(*s, dtype=torch.bfloat16) * 0.8)(F)),
            "w2": _w((lambda *s: torch.randn(*s, dtype=torch.bfloat16) * 0.8)(F, D) * (F ** -0.5)),
        }
    _B_in = _B_setup()

    return {
        "A_x": _A_in["x"],
        "A_k_cache": _A_in["k_cache"],
        "A_v_cache": _A_in["v_cache"],
        "A_wq": _A_in["wq"],
        "A_wo": _A_in["wo"],
        "B_x": _B_in["x"],
        "B_w1": _B_in["w1"],
        "B_b1": _B_in["b1"],
        "B_w2": _B_in["w2"],
    }

def reference(A_x, A_k_cache, A_v_cache, A_wq, A_wo, B_x, B_w1, B_b1, B_w2):
    def _A_ref(x, k_cache, v_cache, wq, wo):
        B, Sq, D = x.shape
        Hq, Dh = 32, 128
        Hkv, Sk = k_cache.shape[1], k_cache.shape[2]
        W = min(4096, max(256, Sk // 4))
        rep = Hq // Hkv
        q = (lambda x, *d: x.permute(*d))((x @ wq).reshape(B, Sq, Hq, Dh), 0, 2, 1, 3)
        k = (lambda x, n, axis: torch.repeat_interleave(x, n, dim=axis))(k_cache[:, :, Sk - W:, :], rep, axis=1)
        v = (lambda x, n, axis: torch.repeat_interleave(x, n, dim=axis))(v_cache[:, :, Sk - W:, :], rep, axis=1)
        scores = torch.einsum("bhqd,bhkd->bhqk", q, k) * (Dh ** -0.5)
        p = _softmax(scores, axis=-1)
        o = torch.einsum("bhqk,bhkd->bhqd", p, v)
        return (lambda x, *d: x.permute(*d))(o, 0, 2, 1, 3).reshape(B, Sq, Hq * Dh) @ wo

    def _B_ref(x, w1, b1, w2):
        h = torch.einsum("bsd,df->bsf", x, w1) + b1
        sp = torch.log1p(torch.exp(-torch.abs(h))) + torch.where(h > 0, h, torch.zeros_like(h))
        act = h * torch.tanh(sp)
        return torch.einsum("bsf,fd->bsd", act, w2)

    x = A_x
    x = x + _A_ref(_layernorm(x, axis=-1), A_k_cache, A_v_cache, A_wq, A_wo)
    x = x + _B_ref(_layernorm(x, axis=-1), B_w1, B_b1, B_w2)
    x = x + _A_ref(_layernorm(x, axis=-1), A_k_cache, A_v_cache, A_wq, A_wo)
    x = x + _B_ref(_layernorm(x, axis=-1), B_w1, B_b1, B_w2)
    return x
```

```python
import re

TRANS = ('v_exp_f32', 'v_log_f32', 'v_rcp_f32', 'v_rsq_f32', 'v_sqrt_f32', 'v_sin_f32', 'v_cos_f32')
_reg = re.compile(r'^-?\|?(?:abs\()?([vas])(?:(\d+)|\[(\d+):(\d+)\])\)?\|?$')

def regs(op):
    op = op.strip()
    if op in ('vcc', 'vcc_lo', 'vcc_hi'): return {('s', 'vcc')}
    if op in ('exec', 'exec_lo', 'exec_hi'): return {('s', 'exec')}
    if op == 'm0': return {('s', 'm0')}
    m = _reg.match(op)
    if not m: return set()
    k = m.group(1)
    if m.group(2) is not None: return {(k, int(m.group(2)))}
    return {(k, i) for i in range(int(m.group(3)), int(m.group(4)) + 1)}

class Ins:
    def __init__(self, text):
        self.text = text
        t = text.split(';')[0].strip()
        p = t.split(None, 1)
        self.mn = mn = p[0]
        rest = p[1] if len(p) > 1 else ''
        ops = [o.strip() for o in re.split(r',\s*(?![^\[]*\])', rest)] if rest else []
        mods = ''
        if ops:
            q = ops[-1].split(None, 1)
            ops[-1] = q[0]
            mods = q[1] if len(q) > 1 else ''
        self.ops, self.mods = ops, mods
        R = [regs(o) for o in ops]
        U = lambda l: set().union(*l) if l else set()
        self.dst, self.src = set(), set()
        self.mfma = mn.startswith('v_mfma') or mn.startswith('v_smfmac')
        self.vmem = mn.startswith(('buffer_', 'global_'))
        self.ds = mn.startswith('ds_')
        self.valu = mn.startswith('v_') and not self.mfma
        self.salu = mn.startswith('s_')
        self.dpp = '_dpp' in mn or 'row_' in mods or 'quad_perm' in mods
        self.perm = mn.startswith('v_permlane')
        self.trans = mn.replace('_e32', '').replace('_e64', '') in TRANS
        self.dot = mn.startswith('v_dot')
        self.rdlane = mn.startswith(('v_readlane', 'v_readfirstlane'))
        self.wrlane = mn.startswith('v_writelane')
        self.ldsdma = self.vmem and (' lds' in ' ' + mods or '_lds_' in mn)
        self.wide_store = self.vmem and 'store' in mn and ('x4' in mn or 'x3' in mn)
        self.sdwa = '_sdwa' in mn
        self.ab = set(); self.c = set(); self.data = set()
        if self.mfma:
            self.dst = R[0]; self.ab = U(R[1:3])
            if mn.startswith('v_smfmac'): self.c = R[0]; self.ab |= R[3]
            else: self.c = R[3]
            self.src = self.ab | self.c
        elif self.vmem:
            if 'store' in mn or 'atomic' in mn:
                self.src = U(R); self.data = R[0] if mn.startswith('buffer') else (R[1] if len(R) > 1 else set())
            elif self.ldsdma: self.src = U(R) | {('s', 'm0')}
            else: self.dst = R[0]; self.src = U(R[1:])
        elif self.ds:
            if 'read' in mn or 'bpermute' in mn or 'swizzle' in mn: self.dst = R[0]; self.src = U(R[1:])
            else: self.src = U(R)
        elif self.valu:
            if self.perm: self.dst = U(R); self.src = U(R)
            else:
                self.dst = R[0]; self.src = U(R[1:])
                if mn.startswith(('v_fmac', 'v_dot2c', 'v_writelane')) or self.dpp or self.sdwa: self.src |= R[0]
                if mn.startswith('v_cndmask') and len(ops) == 3: self.src |= {('s', 'vcc')}
                if mn.startswith(('v_add_co', 'v_addc_co', 'v_sub_co')): self.dst |= R[1]
        elif self.salu:
            if mn.startswith(('s_cmp', 's_bitcmp', 's_cbranch', 's_branch', 's_waitcnt', 's_nop', 's_barrier', 's_sleep', 's_setprio', 's_endpgm')):
                self.src = U(R)
            else:
                self.dst = R[0] if R else set(); self.src = U(R[1:])
        self.states = 1
        if mn == 's_nop': self.states = int(ops[0], 0) + 1

def need(p, c):
    n = 0
    pv = {r for r in p.dst if r[0] in 'va'}; ps = {r for r in p.dst if r[0] == 's'}
    if p.valu:
        if c.mfma and pv & c.src: n = max(n, 2)
        if c.valu and c.dpp and pv & c.src: n = max(n, 2)
        if c.perm and pv & c.src: n = max(n, 2)
        if c.rdlane and pv & c.src: n = max(n, 1)
        if p.trans and c.valu and not c.trans and pv & c.src: n = max(n, 1)
        if p.trans and (c.vmem or c.ds) and pv & c.src: n = max(n, 1)
        if p.sdwa and c.valu and pv & (c.src | c.dst): n = max(n, 1)
        if p.dot and (c.valu or c.vmem or c.ds or c.mfma) and pv & (c.src | c.dst):
            same = c.mn == p.mn and c.dst == p.dst and not (pv & set().union(*[regs(o) for o in c.ops[1:]]))
            if not same: n = max(n, 3)
        if ps:
            if c.valu and ps & c.src: n = max(n, 4 if (c.rdlane or c.wrlane) else 2)
            if c.vmem and ps & c.src: n = max(n, 5)
            if ('s', 'exec') in ps: n = max(n, 5)
    if p.mfma:
        if c.mfma:
            if p.dst & c.ab: n = max(n, 8)
            elif p.dst & c.c and p.dst != c.c: n = max(n, 6)
            elif p.dst & c.dst and p.dst != c.c: n = max(n, 8)
        elif (c.valu or c.vmem or c.ds) and p.dst & (c.src | c.dst): n = max(n, 8)
        if c.valu and p.c & c.dst: n = max(n, 3)
    if p.salu and ('s', 'm0') in ps and c.ldsdma: n = max(n, 1)
    if p.wide_store and (c.valu or c.mfma or c.vmem or c.ds) and p.data & c.dst: n = max(n, 2)
    return n

class Emit:
    def __init__(self):
        self.out = []; self.hist = []; self.npad = 0
    def raw(self, s): self.out.append(s)
    def label(self, name):
        self.out.append(name + ':')
    def __call__(self, text):
        for line in text.split('\n'):
            line = line.strip()
            if not line or line.startswith(';'):
                if line: self.out.append('    ' + line)
                continue
            if line.endswith(':'): self.label(line[:-1]); continue
            c = Ins(line)
            dist = 0; pad = 0
            for p in reversed(self.hist):
                pad = max(pad, need(p, c) - dist)
                dist += p.states
                if dist >= 10: break
            if pad > 0:
                nop = Ins('s_nop %d' % (pad - 1)); self.hist.append(nop); self.out.append('    s_nop %d' % (pad - 1)); self.npad += pad
            self.hist.append(c); self.out.append('    ' + line)
            if len(self.hist) > 24: self.hist = self.hist[-24:]
    def text(self): return '\n'.join(self.out) + '\n'

class Alloc:
    def __init__(self, kind, start, limit):
        self.kind, self.next, self.limit, self.names = kind, start, limit, {}
    def get(self, name, n=1, align=None):
        al = align or (1 if n == 1 else 2)
        self.next = (self.next + al - 1) // al * al
        b = self.next; self.next += n
        assert self.next <= self.limit, (name, self.next)
        self.names[name] = (b, n)
        return R(self.kind, b, n)

class R:
    def __init__(self, kind, base, n): self.kind, self.base, self.n = kind, base, n
    def __str__(self): return f'{self.kind}{self.base}' if self.n == 1 else f'{self.kind}[{self.base}:{self.base+self.n-1}]'
    def __getitem__(self, i):
        if isinstance(i, slice):
            a = i.start or 0; b = i.stop if i.stop is not None else self.n
            assert 0 <= a < b <= self.n
            return R(self.kind, self.base + a, b - a)
        assert 0 <= i < self.n
        return R(self.kind, self.base + i, 1)
```

```python
import sys
from emit import Emit, Alloc, R
NAME = 'interleave_layers__sliding_block_cached__dense_activation_mish__decode'
opt = dict(stamps=0, nt=1, wnt=1, dbg=0, sel=0)
for a in sys.argv[2:]:
    k, v = a.split('='); opt[k] = int(v)
NT = ' nt' if opt['nt'] else ''
WNT = ' nt' if opt['wnt'] else ''

WS_HELLO = 0x1000
WS_H1 = 0x20000; H1_PASS = 0x20000
WS_LOC = 0x80000; LOC_XCD = 0xC000; LOC_PASS = 0x6000
L_H2O = 0; L_H2M = 0x4000; L_H4 = 0x4800; L_H5 = 0x5000; L_H7 = 0x5800
WS_G = 0x200000; G_HOP = 18 * 16384
WS_STAMP = 0x600000
WS_SIZE = 0x800000
OOB = 0x40000000
VB = 0; KB = 65536; TB = 65536; WQB = 139264
QB = WQB; PB = WQB + 512; OBUF = WQB + 1536
XB = 157696; XSZ = 1280; MB = XB + 4 * XSZ
LDS_SIZE = 163840
CSC = 0.12751743
import struct
def fl(x): return '0x%08x' % struct.unpack('<I', struct.pack('<f', x))[0]

e = Emit()
S = Alloc('s', 4, 100); V = Alloc('v', 1, 256); A = Alloc('a', 0, 256)
sW = R('s', 3, 1)
sA, sJ, sPass, sMode = [S.get(n) for n in ('a', 'j', 'pass', 'mode')]
rWS, rK, rV, rWQ, rT, rM = [S.get(n, 4, 4) for n in ('rWS', 'rK', 'rV', 'rWQ', 'rT', 'rM')]
sP = S.get('ptr', 16, 4); sQ = S.get('ptr2', 8, 4)
mT = [S.get('mT%d' % t, 2) for t in range(4)]; m33 = S.get('m33', 2); sT64 = S.get('t64', 2); sSt = S.get('st', 2); sStT = S.get('stt')
(sRole, sC, sH, sH1, sH2, sH3, sHello, sSpin, sFF, sRot, sT0, sT1, sT2, sT3, sLoc, sH1s, sH1l, sG, sSel, sTile, sStage, sE1,
 sM0, sM1) = [S.get(n) for n in
  'role c H H1 H2 H3 hello spin ff rot t0 t1 t2 t3 loc h1s h1l g sel tile stage e1 m0v m1v'.split()]
vL, vN, vKG = V.get('l'), V.get('n'), V.get('kg')
vT = V.get('t', 12, 2)
vX = V.get('x', 8, 4)
vAX = V.get('ax', 36, 4)
vAQ = V.get('aq', 32, 4)
vB = V.get('b', 16, 4)
vAC = V.get('ac', 8, 4)
vD = V.get('d', 8, 4)
vMM = V.get('mm', 10, 4)
vKD = V.get('kd', 4); vVD = V.get('vd', 4)
(vWD, vTD, vWTr, vWTr2, vWTrQ, vXW, vXR, vXRQ, vQW, vQR, vPW, vMR, vOW, vOR, vIdx, vIdx2, vMk0, vMk1, vTag,
 vH1s, vH1l, vH2os, vH2ms, vH2ol, vH2ml, vCl, vCl2, vRl, vRs, vFs, vMean, vRstd, vXr0, vXr1, vBias, vE, vSt, vHl) = [V.get(n) for n in
  'wd td wtr wtr2 wtrq xw xr xrq qw qr pw mr ow or idx idx2 mk0 mk1 tag h1s h1l h2os h2ms h2ol h2ml cl cl2 rl rs fs mean rstd xr0 xr1 bias e st hl'.split()]
vKR = V.get('kr', 4); vVR = V.get('vr', 2); vGs = V.get('gs', 2); vP = V.get('p', 2, 2)
aK = A.get('k', 64, 4); aV = A.get('v', 64, 4); aWQ = A.get('wq', 24, 4); aT = A.get('t', 72, 4)

slow = []
uid = [0]
def lab(p):
    uid[0] += 1; return f'L_{p}{uid[0]}'

class VM:
    n = 0
    def inc(self, k=1): self.n += k; return self.n - 1
    def wait(self, idx): e(f's_waitcnt vmcnt({self.n - idx - 1})')
vm = VM()

nst = [0]
def stamp():
    if not opt['stamps']: return
    k = nst[0]; nst[0] += 1
    e(f's_memrealtime {sSt}\ns_lshl_b32 {sStT}, {sPass}, 5\ns_add_u32 m0, {sStT}, {k}\ns_waitcnt lgkmcnt(0)\nv_writelane_b32 {vSt}, {sSt[0]}, m0')

def mode_store(txt):
    ls, lb = lab('ms'), lab('mb')
    e(f's_cmp_eq_u32 {sMode}, 0\ns_cbranch_scc1 {ls}')
    e(txt)
    e(f'{lb}:')
    slow.append(f'{ls}:\n' + '\n'.join(t + ' sc1' for t in txt.split('\n')) + f'\ns_branch {lb}')

def poll(p, loads, check, first=None):
    l0, l1, l2 = lab(p + 'l'), lab(p + 'c'), lab(p + 'd')
    if first is not None:
        first(l1)
    e(f'{l0}:'); loads(); e('s_waitcnt vmcnt(0)')
    e(f'{l1}:'); check()
    e(f's_cbranch_vccz {l2}\ns_sub_u32 {sSpin}, {sSpin}, 1\ns_cbranch_scc0 {l0}\ns_mov_b32 {sSpin}, 0')
    e(f'{l2}:')

def sentinel_check(regs):
    r = list(regs); acc = vT[0]
    e(f'v_max3_u32 {acc}, {r[0]}, {r[1]}, {r[2] if len(r) > 2 else r[1]}'); r = r[3:]
    while r:
        e(f'v_max3_u32 {acc}, {acc}, {r[0]}, {r[1] if len(r) > 1 else r[0]}'); r = r[2:]
    e(f'v_cmp_eq_u32 vcc, -1, {acc}')

DPP = 'row_mask:0xf bank_mask:0xf'
def wave_reduce(op, rs, start=0):
    steps = [f'row_ror:1 {DPP}', f'row_ror:2 {DPP}', f'row_ror:4 {DPP}', f'row_ror:8 {DPP}',
             'row_bcast:15 row_mask:0xa bank_mask:0xf', 'row_bcast:31 row_mask:0xc bank_mask:0xf'][start:]
    out = []
    for st in steps:
        for r in rs: out.append(f'{op}_dpp {r}, {r}, {r} {st}')
    return out

def srd(r, lo, hi, size):
    e(f's_mov_b32 {r[0]}, {lo}\ns_mov_b32 {r[1]}, {hi}\ns_mov_b32 {r[2]}, {size}\ns_mov_b32 {r[3]}, 0x20000')

def compact_loads(r, soff, flag=' sc1'):
    e(f'buffer_load_dwordx4 {vX[0:4]}, {vCl}, {r}, {soff} offen{flag}')
    e(f'buffer_load_dwordx4 {vX[4:8]}, {vCl2}, {r}, {soff} offen{flag}')

def vec_to_lds():
    e(f'ds_write_b128 {vXW}, {vX[0:4]}')
    e(f's_mov_b64 exec, 0xffff\nds_write_b128 {vXW}, {vX[4:8]} offset:1024\ns_mov_b64 exec, {m33}')

def stats_list():
    s, q = vT[2], vT[3]
    o = [f'v_mov_b32 {s}, 0', f'v_mov_b32 {q}, 0']
    for i in range(8):
        o.append(f'v_dot2c_f32_bf16 {s}, 0x3f803f80, {vX[i]}')
        o.append(f'v_dot2c_f32_bf16 {q}, {vX[i]}, {vX[i]}')
    o += wave_reduce('v_add_f32', [s, q])
    o += [f'v_readlane_b32 {sT0}, {s}, 63', f'v_readlane_b32 {sT1}, {q}, 63',
          f'v_mov_b32 {s}, {fl(1/576)}',
          f'v_mul_f32 {vMean}, {sT0}, {s}', f'v_mul_f32 {q}, {sT1}, {s}',
          f'v_fma_f32 {q}, -{vMean}, {vMean}, {q}', f'v_max_f32 {q}, 0, {q}',
          f'v_add_f32 {q}, {fl(1e-5)}, {q}', f'v_rsq_f32 {vRstd}, {q}']
    return o

def interleave(mf, fill, per=2):
    fill = list(fill)
    for m in mf:
        e(m)
        for _ in range(per):
            if fill: e(fill.pop(0))
    for f in fill: e(f)

def zero(r):
    for i in range(r.n): e(f'v_mov_b32 {r[i]}, 0')

def dma_kv(r, voffs, ldsbase, t):
    e(f's_add_u32 m0, {sT2}, {ldsbase + t * 1024}')
    e(f'buffer_load_dwordx4 {voffs[t & 3]}, {r}, {sRot} offen{NT} lds')
    e(f's_add_u32 {sRot}, {sRot}, 1024\ns_and_b32 {sRot}, {sRot}, 16383')
    return vm.inc()

def dma_tail(n, pitch):
    e(f's_mul_i32 {sT0}, {sW}, {8 * pitch}\ns_lshl_b32 {sT1}, {sW}, 10\ns_add_u32 m0, {sT1}, {TB}')
    for k in range(n):
        e(f'buffer_load_dwordx4 {vTD}, {rT}, {sT0} offen{WNT} lds')
        if k != n - 1: e(f's_add_u32 {sT0}, {sT0}, {32 * pitch}\ns_add_u32 m0, m0, 4096')

def tail_to_regs(steps):
    e('s_waitcnt vmcnt(0)\ns_barrier')
    for t in range(steps):
        for p in range(4):
            off = t * 8192 + (p >> 1) * 4096 + (p & 1) * 256
            ad = vWTr if off < 65536 else vWTr2
            e(f'ds_read_b64_tr_b16 {aT[8*t+2*p:8*t+2*p+2]}, {ad} offset:{off & 65535}')
    e('s_waitcnt lgkmcnt(0)')

def gemv(addr, steps, w, fill=()):
    for t in range(steps): e(f'ds_read_b128 {vAX[4*t:4*t+4]}, {addr} offset:{t*128}')
    e('s_mov_b64 exec, -1')
    mf = []
    for t in range(steps):
        mf.append(f's_waitcnt lgkmcnt({steps-1-t})\nv_smfmac_f32_16x16x64_bf16 {vD[0:4]}, {vAX[4*t:4*t+4]}, {w[8*t:8*t+8]}, {vIdx}')
    interleave(mf, fill, per=3)

def push():
    e(f'v_add_f32 {vT[0]}, {vD[0]}, {vD[1]}')
    e(f'v_bfi_b32 {vT[0]}, {sFF}, {vTag}, {vT[0]}')
    e(f's_add_u32 {sT0}, {sG}, 8192')
    for cp in (sG, sT0):
        for h in range(2): e(f'buffer_store_dword {vT[0]}, {vGs[h]}, {rWS}, {cp} offen sc1')

hdr = open('cdna_kernels/' + NAME + '.s.ref').read().split('; Override launch')[0]
e.raw(hdr.rstrip())
e.raw(f'; @launch grid=(256,1,1) block=(256,1,1) lds={LDS_SIZE}')
e.raw('.amdgcn_target "amdgcn-amd-amdhsa--gfx950"\n.text')
e.raw(f'.globl {NAME}_kernel\n.p2align 8\n.type {NAME}_kernel,@function\n{NAME}_kernel:')
t0, t1, t2, t3, t4, t5 = [vT[i] for i in range(6)]
e(f'''s_cmp_ge_u32 s2, 256
s_cbranch_scc1 L_end
s_load_dwordx16 {sP}, s[0:1], 0
s_load_dwordx8 {sQ}, s[0:1], 64
s_getpc_b64 {sT64}
L_pc:
v_lshrrev_b32 {t0}, 6, v0
v_and_b32 {vL}, 63, v0
v_readfirstlane_b32 {sW}, {t0}
s_and_b32 {sA}, s2, 7
s_lshr_b32 {sJ}, s2, 3
v_and_b32 {vN}, 15, {vL}
v_lshrrev_b32 {vKG}, 4, {vL}
s_mov_b32 {sPass}, 0
s_mov_b32 {sMode}, 0
s_mov_b32 {sSpin}, 400000
s_mov_b32 {sFF}, 0xff''')
if opt['stamps']:
    e(f'v_mov_b32 {vSt}, 0');
for tau in range(4):
    e(f'v_add_u32 {t0}, {4*tau}, {vKG}\nv_xor_b32 {t0}, {t0}, {vN}\nv_lshlrev_b32 {t0}, 4, {t0}\nv_lshl_add_u32 {vKD[tau]}, {vKG}, 8, {t0}')
e(f'''s_and_b32 {sT0}, {sW}, 1
s_lshl_b32 {sT0}, {sT0}, 2
v_lshrrev_b32 {t1}, 5, {vL}
v_lshl_add_u32 {t1}, {t1}, 1, {sT0}
v_and_b32 {t2}, 7, {vL}
v_xor_b32 {t2}, {t2}, {t1}
v_lshlrev_b32 {t2}, 4, {t2}
v_lshrrev_b32 {t3}, 3, {vL}
v_lshl_add_u32 {vWD}, {t3}, 13, {t2}
v_lshlrev_b32 {vCl}, 4, {vL}
v_add_u32 {vCl2}, 1024, {vCl}
v_mov_b32 {t4}, {OOB}
v_cmp_gt_u32 vcc, 8, {vL}
v_cndmask_b32 {vCl2}, {t4}, {vCl2}, vcc''')
e(f'''s_mul_i32 {sRole}, {sJ}, 57
s_lshr_b32 {sRole}, {sRole}, 9
s_mul_i32 {sT0}, {sRole}, 9
s_sub_u32 {sC}, {sJ}, {sT0}
s_lshl_b32 {sTile}, {sC}, 2
s_add_u32 {sTile}, {sTile}, {sW}
s_and_b32 {sRot}, {sJ}, 3
s_lshl_b32 {sRot}, {sRot}, 12''')
e(f'''s_lshr_b32 {sT0}, {sJ}, 4
s_lshl1_add_u32 {sT0}, {sA}, {sT0}
s_lshl_b32 {sT0}, {sT0}, 23
s_and_b32 {sT1}, {sJ}, 15
s_lshl_b32 {sT1}, {sT1}, 16
s_add_u32 {sT0}, {sT0}, {sT1}
s_lshl_b32 {sT2}, {sW}, 14
s_add_u32 {sT0}, {sT0}, {sT2}
s_add_u32 {sT0}, {sT0}, {28672*256}''')
e(f'''s_and_b32 {sT1}, {sJ}, 3
s_mul_i32 {sT1}, {sT1}, {144*8192}
s_lshr_b32 {sT3}, {sJ}, 2
s_lshl_b32 {sT3}, {sT3}, 7
s_add_u32 {sT1}, {sT1}, {sT3}
s_lshl_b32 {sT3}, {sA}, 10
s_add_u32 {sT1}, {sT1}, {sT3}
s_mul_i32 {sLoc}, {sA}, {LOC_XCD}
s_add_u32 {sLoc}, {sLoc}, {WS_LOC}
s_waitcnt lgkmcnt(0)''')
px, pk, pv, pwq, pwo, pbx, pw1, pb1 = [sP[2*i:2*i+2] for i in range(8)]
pw2, pout, pdbg, pws = [sQ[2*i:2*i+2] for i in range(4)]
srd(rWS, pws[0], pws[1], WS_SIZE)
srd(rM, px[0], px[1], 1152)
e(f'buffer_load_dword {vE}, off, {rWS}, 0 sc1'); iE = vm.inc()
compact_loads(rM, 0, ''); iX = vm.inc(2) + 1
e(f's_add_u32 {rWQ[0]}, {pwq[0]}, {sT1}\ns_addc_u32 {rWQ[1]}, {pwq[1]}, 0\ns_mov_b32 {rWQ[2]}, {143*8192+128}\ns_mov_b32 {rWQ[3]}, 0x20000')
e(f's_add_u32 {rK[0]}, {pk[0]}, {sT0}\ns_addc_u32 {rK[1]}, {pk[1]}, 0\ns_mov_b32 {rK[2]}, 16384\ns_mov_b32 {rK[3]}, 0x20000')
e(f's_add_u32 {rV[0]}, {pv[0]}, {sT0}\ns_addc_u32 {rV[1]}, {pv[1]}, 0\ns_mov_b32 {rV[2]}, 16384\ns_mov_b32 {rV[3]}, 0x20000')
e(f's_lshl_b32 {sT0}, {sW}, 16\ns_lshl_b32 {sT1}, {sW}, 10\ns_add_u32 m0, {sT1}, {WQB}')
for k in range(5):
    if k == 4:
        e(f's_and_b32 {sT1}, {sW}, 1\ns_add_u32 {sT1}, {sT1}, 16\ns_lshl_b32 {sT0}, {sT1}, 16\ns_lshl_b32 {sT1}, {sT1}, 10\ns_add_u32 m0, {sT1}, {WQB}')
    e(f'buffer_load_dwordx4 {vWD}, {rWQ}, {sT0} offen{WNT} lds'); iWQ = vm.inc()
    if k < 3: e(f's_add_u32 {sT0}, {sT0}, {32*8192}\ns_add_u32 m0, m0, 4096')
e(f'''s_lshl2_add_u32 {sT0}, {sJ}, {sW}
s_mul_i32 {sT0}, {sT0}, 384
s_add_u32 {sT0}, {sT0}, {sLoc}
v_mov_b32 {vB[0]}, -1
v_mov_b32 {vB[1]}, -1
v_mov_b32 {vB[2]}, -1
v_mov_b32 {vB[3]}, -1
v_cmp_gt_u32 vcc, 24, {vL}
v_cndmask_b32 {t0}, {t4}, {vCl}, vcc
buffer_store_dwordx4 {vB[0:4]}, {t0}, {rWS}, {sT0} offen sc1'''); iClr = vm.inc()
iK = []
for t in range(6): iK.append(dma_kv(rK, vKD, KB, t))
stamp()
e(f'''v_lshlrev_b32 {t0}, 7, v0
v_min_u32 {t0}, L_end-L_pc, {t0}
global_load_dword {vB[4]}, {t0}, {sT64}'''); vm.inc()
e(f'''v_and_b32 {t0}, 3, {vL}
v_lshlrev_b32 {t0}, 3, {t0}
v_and_b32 {t1}, 1, {vKG}
v_lshl_add_u32 {t0}, {t1}, 2, {t0}
s_lshl_b32 {sT0}, {sTile}, 5
v_add_u32 {t0}, {sT0}, {t0}
buffer_load_dword {vXr0}, {t0}, {rM}, 0 offen
v_and_b32 {t1}, 0x2c, {vL}
v_cmp_eq_u32 vcc, 0, {t1}
v_cndmask_b32 {vRs}, {t4}, {t0}, vcc'''); iXr = vm.inc()
e(f'''s_mov_b32 {rM[0]}, {pb1[0]}
s_mov_b32 {rM[1]}, {pb1[1]}
s_mov_b32 {rM[2]}, 9216
v_lshl_add_u32 {t0}, {vN}, 1, {sT0}
s_mul_i32 {sT1}, {sA}, 1152
buffer_load_ushort {vBias}, {t0}, {rM}, {sT1} offen
v_cmp_gt_u32 vcc, 16, {vL}
v_cndmask_b32 {vFs}, {t4}, {t0}, vcc'''); iBias = vm.inc()
e(f'''s_cmp_eq_u32 {sRole}, 1
s_cselect_b32 {rT[0]}, {pw1[0]}, {pw2[0]}
s_cselect_b32 {rT[1]}, {pw1[1]}, {pw2[1]}
s_mov_b32 {sT0}, {576*1152}
s_mov_b32 {sT1}, 1152
s_mov_b32 {rT[2]}, {575*1152+128}
s_cselect_b32 {sT0}, 1152, {sT0}
s_cselect_b32 {sT1}, 9216, {sT1}
s_cselect_b32 {rT[2]}, {575*9216+128}, {rT[2]}
s_cmp_eq_u32 {sRole}, 0
s_cselect_b32 {rT[0]}, {pwo[0]}, {rT[0]}
s_cselect_b32 {rT[1]}, {pwo[1]}, {rT[1]}
s_cselect_b32 {sT0}, {512*1152}, {sT0}
s_cselect_b32 {rT[2]}, {511*1152+128}, {rT[2]}
s_mul_i32 {sT0}, {sT0}, {sA}
s_lshl_b32 {sT3}, {sC}, 7
s_add_u32 {sT0}, {sT0}, {sT3}
s_add_u32 {rT[0]}, {rT[0]}, {sT0}
s_addc_u32 {rT[1]}, {rT[1]}, 0
s_mov_b32 {rT[3]}, 0x20000
v_mul_lo_u32 {vTD}, {t3}, {sT1}
v_add_u32 {vTD}, {vTD}, {t2}''')
for t in range(4):
    e(f's_mov_b32 {mT[t][0]}, {0x000F000F << (4*t)}\ns_mov_b32 {mT[t][1]}, {0x000F000F << (4*t)}')
e(f's_mov_b32 {m33[0]}, 0x33333333\ns_mov_b32 {m33[1]}, 0x33333333')
for tau in range(4):
    e(f'v_and_b32 {t0}, 1, {vKG}\nv_lshlrev_b32 {t0}, 1, {t0}\nv_or_b32 {t0}, {tau << 2}, {t0}\nv_xor_b32 {t0}, {t0}, {vN}\nv_lshlrev_b32 {t0}, 4, {t0}\nv_lshl_add_u32 {vVD[tau]}, {vKG}, 8, {t0}')
e(f's_add_u32 {sT0}, {sT2}, {KB}')
for q in range(4):
    e(f'v_add_u32 {t0}, {4*q}, {vKG}\nv_xor_b32 {t0}, {t0}, {vN}\nv_lshlrev_b32 {t0}, 4, {t0}\nv_lshl_add_u32 {t0}, {vN}, 8, {t0}\nv_add_u32 {vKR[q]}, {sT0}, {t0}')
e(f'''v_lshrrev_b32 {t0}, 5, {vL}
v_lshlrev_b32 {t0}, 4, {t0}
v_and_b32 {t1}, 1, {vKG}
v_lshl_add_u32 {t0}, {t1}, 2, {t0}
v_bfe_u32 {t2}, {vL}, 2, 1
v_add_u32 {t0}, {t0}, {t2}
v_bfe_u32 {t3}, {vL}, 3, 1
v_lshl_add_u32 {t0}, {t3}, 3, {t0}
v_lshl_add_u32 {t1}, {t3}, 1, {t1}
v_and_b32 {t3}, 3, {vL}
v_lshlrev_b32 {t3}, 3, {t3}
v_xor_b32 {t5}, {sW}, {t1}
v_lshl_add_u32 {t5}, {t5}, 5, {t3}
v_lshl_add_u32 {t5}, {t0}, 7, {t5}
v_add_u32 {vWTr}, {TB}, {t5}
v_add_u32 {vWTr2}, {TB + 65536}, {t5}
v_add_u32 {vWTrQ}, {WQB}, {t5}
v_lshl_add_u32 {t1}, {t1}, 1, {t2}
s_lshl_b32 {sT0}, {sW}, 1
v_xor_b32 {t1}, {sT0}, {t1}
v_lshl_add_u32 {t0}, {t0}, 8, {t3}
v_lshl_add_u32 {vVR[0]}, {t1}, 5, {t0}
v_xor_b32 {t1}, 1, {t1}
v_lshl_add_u32 {vVR[1]}, {t1}, 5, {t0}''')
e(f'''s_mul_i32 {sT0}, {sW}, {XSZ}
s_add_u32 {sT0}, {sT0}, {XB}
v_add_u32 {vXW}, {sT0}, {vCl}
v_and_b32 {t0}, 1, {vL}
v_lshlrev_b32 {t0}, 4, {t0}
v_lshl_add_u32 {t0}, {vKG}, 5, {t0}
v_add_u32 {vXR}, {sT0}, {t0}
s_and_b32 {sT1}, {sJ}, 3
s_mul_i32 {sT1}, {sT1}, 288
v_add_u32 {vXRQ}, {sT1}, {vXR}
v_add_u32 {vOR}, {OBUF}, {t0}
v_bfe_u32 {t1}, {vL}, 1, 1
v_lshl_add_u32 {t0}, {t1}, 7, {t0}
v_add_u32 {vQR}, {QB}, {t0}
v_lshlrev_b32 {t0}, 5, {vKG}
v_lshl_add_u32 {t0}, {t1}, 4, {t0}
v_bfe_u32 {t1}, {vL}, 2, 2
v_lshl_add_u32 {t0}, {t1}, 2, {t0}
v_and_b32 {t1}, 1, {vL}
v_lshl_add_u32 {t0}, {t1}, 1, {t0}
s_and_b32 {sT0}, {sW}, 1
s_lshl_b32 {sT0}, {sT0}, 8
s_lshr_b32 {sT1}, {sW}, 1
s_lshl_b32 {sT1}, {sT1}, 7
s_add_u32 {sT0}, {sT0}, {sT1}
s_add_u32 {sT0}, {sT0}, {QB}
v_add_u32 {vQW}, {sT0}, {t0}
s_lshl_b32 {sT0}, {sW}, 8
s_add_u32 {sT1}, {sT0}, {PB}
v_lshl_add_u32 {vPW}, {vL}, 1, {sT1}
v_lshlrev_b32 {t0}, 3, {vKG}
v_add_u32 {vMR}, {MB}, {t0}
s_add_u32 {sT1}, {sT0}, {OBUF}
v_and_b32 {t0}, 8, {t0}
v_lshl_add_u32 {t0}, {vN}, 4, {t0}
v_add_u32 {vOW}, {sT1}, {t0}''')
e(f'''v_and_b32 {t0}, 1, {vL}
v_mov_b32 {t1}, 0xaaaa
v_mul_u32_u24 {t1}, {t0}, {t1}
v_add_u32 {vIdx}, 0x4444, {t1}
v_and_b32 {t0}, 3, {vL}
v_xor_b32 {t1}, 1, {t0}
v_lshl_add_u32 {t0}, {t1}, 2, {t0}
v_mul_u32_u24 {vIdx2}, 0x1111, {t0}
v_bfe_u32 {t0}, {vL}, 2, 1
v_mul_u32_u24 {vMk1}, 0xffff, {t0}
v_xor_b32 {vMk0}, 0xffff, {vMk1}''')
e(f'''v_lshlrev_b32 {vH1l}, 3, {vL}
v_cmp_gt_u32 vcc, 16, {vL}
v_cndmask_b32 {vH1s}, {t4}, {vH1l}, vcc
s_lshl_b32 {sT0}, {sA}, 14
s_add_u32 {sT0}, {sT0}, {WS_H1}
s_lshl_b32 {sT1}, {sJ}, 9
s_add_u32 {sH1s}, {sT0}, {sT1}
s_lshl_b32 {sT1}, {sW}, 7
s_add_u32 {sH1s}, {sH1s}, {sT1}
s_lshr_b32 {sT1}, {sJ}, 4
s_lshl2_add_u32 {sT3}, {sT1}, {sW}
s_lshl_b32 {sT3}, {sT3}, 11
s_add_u32 {sH1l}, {sT0}, {sT3}
s_lshl_b32 {sT1}, {sT1}, 1
s_and_b32 {sT0}, {sJ}, 15
v_lshrrev_b32 {t0}, 5, {vL}
v_add_u32 {t0}, {sT1}, {t0}
v_and_b32 {t1}, 31, {vL}
v_lshlrev_b32 {vHl}, 2, {t1}
v_lshlrev_b32 {t1}, 1, {t1}
v_lshl_add_u32 {t1}, {t0}, 12, {t1}
s_lshl_b32 {sT3}, {sT0}, 2
s_add_u32 {sT3}, {sT3}, {sW}
s_lshl_b32 {sE1}, {sT3}, 6
v_add_u32 {vH2os}, {sE1}, {t1}
v_add_u32 {t0}, {sT1}, {vL}
v_lshlrev_b32 {t0}, 9, {t0}
s_lshl_b32 {sE1}, {sT3}, 3
s_add_u32 {sE1}, {sE1}, {L_H2M}
v_add_u32 {t0}, {sE1}, {t0}
v_cmp_gt_u32 vcc, 2, {vL}
v_cndmask_b32 {vH2ms}, {t4}, {t0}, vcc
s_lshl_b32 {sT0}, {sW}, 12
v_add_u32 {vH2ol}, {sT0}, {vCl}
v_lshrrev_b32 {t0}, 3, {vN}
v_lshlrev_b32 {t0}, 3, {t0}
v_lshl_add_u32 {t0}, {vKG}, 1, {t0}
v_bfe_u32 {t1}, {vL}, 2, 1
v_add_u32 {t0}, {t0}, {t1}
v_and_b32 {t1}, 3, {vL}
v_lshlrev_b32 {t1}, 3, {t1}
v_lshl_add_u32 {t0}, {t0}, 5, {t1}
s_lshl_b32 {sT0}, {sW}, 9
s_add_u32 {sT0}, {sT0}, {L_H2M}
v_add_u32 {vH2ml}, {sT0}, {t0}''')
def chunked(dst, lin):
    e(f'v_lshrrev_b32 {t5}, 13, {lin}\nv_lshlrev_b32 {t5}, 13, {t5}\nv_add_u32 {dst}, {t5}, {lin}')
for h in range(2):
    e(f'''v_add_u32 {t0}, {4*h}, {vKG}
v_mul_u32_u24 {t0}, 36, {t0}
v_add_u32 {t0}, {sTile}, {t0}
v_lshlrev_b32 {t0}, 9, {t0}
s_lshl_b32 {sT0}, {sA}, 6
v_lshl_add_u32 {t1}, {vN}, 2, {sT0}
v_add_u32 {t0}, {t0}, {t1}''')
    chunked(vGs[h], t0)
e(f'''s_mul_i32 {sT0}, {sA}, 36
s_add_u32 {sT0}, {sT0}, {sTile}
s_lshl_b32 {sT0}, {sT0}, 9
v_and_b32 {t0}, 31, {vL}
v_lshl_add_u32 {t0}, {t0}, 4, {sT0}''')
chunked(vRl, t0)
e(f'''s_add_u32 {sG}, {pws[0]}, 0x1fffff
s_and_b32 {sG}, {sG}, 0xffe00000
s_sub_u32 {sG}, {sG}, {pws[0]}
s_add_u32 {sG}, {sG}, {WS_G}
s_mov_b32 {sSel}, {opt['sel'] * 8192}
s_cmp_eq_u32 {sRole}, 2
s_cselect_b32 {sT0}, {G_HOP}, 0
s_add_u32 {sG}, {sG}, {sT0}''')
for i in range(36): e(f'v_mov_b32 {vAX[i]}, 0x3f803f80')
zero(vAQ); zero(vD[0:4])
vm.wait(iE)
e(f'''v_readfirstlane_b32 {sE1}, {vE}
s_getreg_b32 {sT0}, hwreg(HW_REG_XCC_ID, 0, 4)
s_add_u32 {sE1}, {sE1}, 1
s_mul_i32 {sH}, {sE1}, 0x01010101
s_lshr_b32 {sH1}, {sH}, 8
s_lshr_b32 {sH2}, {sH}, 16
s_lshr_b32 {sH3}, {sH}, 24
s_andn2_b32 {sHello}, {sH}, 15
s_or_b32 {sHello}, {sHello}, {sT0}
v_and_b32 {t0}, 3, {vL}
v_lshlrev_b32 {t0}, 3, {t0}
v_bfe_u32 {vTag}, {sH}, {t0}, 8''')
for t in range(6, 9): iK.append(dma_kv(rK, vKD, KB, t))
vm.wait(iClr)
for t in range(9, 12): iK.append(dma_kv(rK, vKD, KB, t))
e('s_barrier')
stamp()
e(f'''s_lshl_b32 {sT0}, {sA}, 7
s_lshl2_add_u32 {sT0}, {sJ}, {sT0}
s_add_u32 {sT0}, {sT0}, {WS_HELLO}
v_mov_b32 {t0}, {sHello}
v_cmp_eq_u32 vcc, 0, v0
v_cndmask_b32 {t1}, {t4}, v0, vcc
buffer_store_dword {t0}, {t1}, {rWS}, {sT0} offen sc1'''); vm.inc()
for t in range(3):
    for p in range(4 if t < 2 else 2):
        e(f'ds_read_b64_tr_b16 {aWQ[8*t+2*p:8*t+2*p+2]}, {vWTrQ} offset:{t*8192 + (p>>1)*4096 + (p&1)*256}')
for i in range(4): e(f'v_accvgpr_write_b32 {aWQ[20+i]}, 0')
e(f's_waitcnt lgkmcnt(0)\ns_mov_b32 exec_lo, 0')
for i in range(4): e(f'v_accvgpr_write_b32 {aWQ[16+i]}, 0')
e('s_mov_b32 exec_lo, -1\ns_barrier\ns_branch L_q')

e('L_top:')
zero(vD[0:4])
e(f's_add_u32 {sT2}, {sLoc}, {L_H7 - LOC_PASS}')
poll('x', lambda: compact_loads(rWS, sT2), lambda: sentinel_check([vX[i] for i in range(8)]))
e('L_q:')
stamp()
vec_to_lds()
gemv(vXRQ, 3, aWQ)
e(f'''v_add_f32 {vT[0]}, {vD[0]}, {vD[1]}
v_add_f32 {vT[1]}, {vD[2]}, {vD[3]}
v_bfi_b32 {vT[0]}, {sFF}, {vTag}, {vT[0]}
v_bfi_b32 {vT[1]}, {sFF}, {vTag}, {vT[1]}''')
mode_store(f'buffer_store_dwordx2 {vT[0:2]}, {vH1s}, {rWS}, {sH1s} offen'); vm.inc()
stamp()
for s in stats_list(): e(s)
zero(vD)
def h1_loads():
    for k in range(4): e(f'buffer_load_dwordx2 {vB[2*k:2*k+2]}, {vH1l}, {rWS}, {sH1l} offen offset:{512*k} sc1')
def h1_check():
    e(f'v_xor_b32 {vT[0]}, {vB[0]}, {vTag}')
    for k in range(1, 8): e(f'v_bitop3_b32 {vT[0]}, {vB[k]}, {vTag}, {vT[0]} bitop3:0xbe')
    e(f'v_and_b32 {vT[0]}, 0xff, {vT[0]}\nv_cmp_ne_u32 vcc, 0, {vT[0]}')
def kreads(t):
    for q in range(4): e(f'ds_read_b128 {aK[16*t+4*q:16*t+4*q+4]}, {vKR[q]} offset:{t*4096}')
def hello_load(): e(f'buffer_load_dword {vE}, {vHl}, {rWS}, {sT1} offen sc1')
def h1_first(lchk):
    lp2 = lab('p2')
    e(f's_cmp_lg_u32 {sPass}, 0\ns_cbranch_scc1 {lp2}')
    e(f's_lshl_b32 {sT2}, {sW}, 14')
    for t in range(12, 16): iK.append(dma_kv(rK, vKD, KB, t))
    vm.wait(iK[7]); kreads(0); kreads(1)
    e(f'v_lshlrev_b32 {vBias}, 16, {vBias}\nv_and_b32 {vXr1}, 0xffff0000, {vXr0}\nv_lshlrev_b32 {vXr0}, 16, {vXr0}')
    iV = []
    for t in range(0, 4): iV.append(dma_kv(rV, vVD, VB, t))
    vm.wait(iK[11]); kreads(2)
    for t in range(4, 6): iV.append(dma_kv(rV, vVD, VB, t))
    vm.wait(iK[15]); kreads(3)
    stamp()
    e(f's_lshl_b32 {sT1}, {sA}, 7\ns_add_u32 {sT1}, {sT1}, {WS_HELLO}')
    hello_load(); vm.inc()
    h1_loads(); iH = vm.inc(4) + 3
    for t in range(6, 16): iV.append(dma_kv(rV, vVD, VB, t))
    vm.wait(iH)
    def hello_check():
        e(f'v_xor_b32 {vT[0]}, {sH}, {vE}\nv_cmp_lt_u32 vcc, 15, {vT[0]}')
    poll('he', hello_load, hello_check, first=lambda l: e(f's_branch {l}'))
    e(f'v_cmp_ne_u32 vcc, {sHello}, {vE}\ns_cmp_eq_u64 vcc, 0\ns_cselect_b32 {sMode}, 1, 0')
    e(f's_branch {lchk}')
    e(f'{lp2}:')
poll('h1', h1_loads, h1_check, first=h1_first)
stamp()
e(f'''v_add_f32 {vT[0]}, {vB[0]}, {vB[2]}
v_add_f32 {vT[1]}, {vB[1]}, {vB[3]}
v_add_f32 {vT[2]}, {vB[4]}, {vB[6]}
v_add_f32 {vT[3]}, {vB[5]}, {vB[7]}
v_add_f32 {vT[0]}, {vT[0]}, {vT[2]}
v_add_f32 {vT[1]}, {vT[1]}, {vT[3]}
v_fma_f32 {vT[0]}, -{vMean}, {vT[1]}, {vT[0]}
v_mul_f32 {vT[0]}, {vRstd}, {vT[0]}
v_cvt_pk_bf16_f32 {vT[0]}, {vT[0]}, {vT[0]}
ds_write_b16 {vQW}, {vT[0]}
s_waitcnt lgkmcnt(0)
s_barrier''')
for t in range(4):
    e(f's_mov_b64 exec, {mT[t]}')
    for s in range(2): e(f'ds_read_b128 {vAQ[16*s+4*t:16*s+4*t+4]}, {vQR} offset:{256*s}')
e('s_mov_b64 exec, -1')
for t in range(4):
    for s in range(2):
        e(f's_waitcnt lgkmcnt({7-2*t-s})\nv_smfmac_f32_16x16x64_bf16 {vD[0:4]}, {vAQ[16*s+4*t:16*s+4*t+4]}, {aK[16*t+8*s:16*t+8*s+8]}, {vIdx}')
p0, p1 = vP[0], vP[1]
e(f'''v_add_f32 {p0}, {vD[0]}, {vD[1]}
v_add_f32 {p1}, {vD[2]}, {vD[3]}
v_mul_f32 {p0}, {fl(CSC)}, {p0}
v_mul_f32 {p1}, {fl(CSC)}, {p1}
v_max_f32_dpp {vT[0]}, {p0}, {p0} row_ror:1 {DPP}
v_max_f32_dpp {vT[1]}, {p1}, {p1} row_ror:1 {DPP}''')
fill = [f'v_mov_b32 {vD[i]}, 0' for i in range(4)]
red = wave_reduce('v_max_f32', [vT[0], vT[1]], start=1)
for i in range(0, len(red), 2):
    if fill: e(fill.pop(0))
    e(red[i]); e(red[i+1])
e(f'''v_readlane_b32 {sM0}, {vT[0]}, 63
v_readlane_b32 {sM1}, {vT[1]}, 63
v_subrev_f32 {p0}, {sM0}, {p0}
v_subrev_f32 {p1}, {sM1}, {p1}
v_exp_f32 {p0}, {p0}
v_exp_f32 {p1}, {p1}
v_mov_b32 {vT[2]}, {sM0}
v_mov_b32 {vT[3]}, {sM1}
v_cvt_pk_bf16_f32 {vT[0]}, {p0}, {p1}
s_lshl_b32 {sT0}, {sW}, 3
s_add_u32 {sT0}, {sT0}, {MB}
ds_write_b16 {vPW}, {vT[0]}
ds_write_b16_d16_hi {vPW}, {vT[0]} offset:128
v_mov_b32 {vT[4]}, {sT0}
s_mov_b64 exec, 1
ds_write_b64 {vT[4]}, {vT[2:4]}
s_mov_b64 exec, -1''')
stamp()
lp2 = lab('p2'); lno = lab('no')
e(f's_cmp_lg_u32 {sPass}, 0\ns_cbranch_scc1 {lp2}')
e(f's_cmp_lg_u32 {sRole}, 0\ns_cbranch_scc1 {lno}')
dma_tail(16, 1152)
e(f's_waitcnt vmcnt(16)\ns_branch {lno}b')
e(f'{lno}:\ns_waitcnt vmcnt(0)\n{lno}b:')
e('s_barrier')
stamp()
for u in range(4):
    for tau in range(2):
        for p in range(4):
            e(f'ds_read_b64_tr_b16 {aV[16*u+8*tau+2*p:16*u+8*tau+2*p+2]}, {vVR[tau]} offset:{u*16384 + (p>>1)*8192 + (p&1)*512}')
e(f'{lp2}:')
if opt['stamps']: nst_keep = nst[0]
e('s_waitcnt lgkmcnt(0)\ns_barrier')
for u in range(4):
    e(f's_mov_b64 exec, {mT[u]}\nds_read_b128 {vAQ[4*u:4*u+4]}, {vQR} offset:{PB - QB + 256*u}')
e(f'''s_mov_b64 exec, -1
v_mov_b32 {vT[4]}, {MB}
ds_read_b128 {vMM[0:4]}, {vT[4]}
ds_read_b128 {vMM[4:8]}, {vT[4]} offset:16
ds_read_b64 {vMM[8:10]}, {vMR}''')
for s in wave_reduce('v_add_f32', [p0, p1]): e(s)
e(f'''v_readlane_b32 {sT0}, {p0}, 63
v_readlane_b32 {sT1}, {p1}, 63
v_writelane_b32 {vT[2]}, {sM1}, 1
v_mov_b32 {vT[3]}, {sT0}
v_writelane_b32 {vT[3]}, {sT1}, 1''')
mode_store(f'buffer_store_dwordx2 {vT[2:4]}, {vH2ms}, {rWS}, {sLoc} offen')
mf = []
for u in range(4):
    for tau in range(2):
        w = f's_waitcnt lgkmcnt({6-u})\n' if tau == 0 else ''
        mf.append(f'{w}v_smfmac_f32_16x16x64_bf16 {vD[4*tau:4*tau+4]}, {vAQ[4*u:4*u+4]}, {aV[16*u+8*tau:16*u+8*tau+8]}, {vIdx}')
for m in mf: e(m)
f0, f1 = vT[4], vT[5]
e(f'''s_waitcnt lgkmcnt(0)
v_max3_f32 {f0}, {vMM[0]}, {vMM[2]}, {vMM[4]}
v_max3_f32 {f1}, {vMM[1]}, {vMM[3]}, {vMM[5]}
v_max_f32 {f0}, {f0}, {vMM[6]}
v_max_f32 {f1}, {f1}, {vMM[7]}
v_sub_f32 {f0}, {vMM[8]}, {f0}
v_sub_f32 {f1}, {vMM[9]}, {f1}
v_exp_f32 {f0}, {f0}
v_exp_f32 {f1}, {f1}
v_add_f32 {vT[0]}, {vD[0]}, {vD[1]}
v_add_f32 {vT[1]}, {vD[2]}, {vD[3]}
v_add_f32 {vT[2]}, {vD[4]}, {vD[5]}
v_add_f32 {vT[3]}, {vD[6]}, {vD[7]}
v_mul_f32 {vT[0]}, {f0}, {vT[0]}
v_mul_f32 {vT[1]}, {f1}, {vT[1]}
v_mul_f32 {vT[2]}, {f0}, {vT[2]}
v_mul_f32 {vT[3]}, {f1}, {vT[3]}
v_permlane32_swap_b32 {vT[0]}, {vT[1]}
v_permlane32_swap_b32 {vT[2]}, {vT[3]}
v_add_f32 {vT[0]}, {vT[0]}, {vT[1]}
v_add_f32 {vT[2]}, {vT[2]}, {vT[3]}
v_permlane16_swap_b32 {vT[0]}, {vT[2]}
v_add_f32 {vT[0]}, {vT[0]}, {vT[2]}
v_cvt_pk_bf16_f32 {vT[0]}, {vT[0]}, {vT[0]}''')
mode_store(f'buffer_store_short {vT[0]}, {vH2os}, {rWS}, {sLoc} offen')
stamp()
base_st = nst[0]
zero(vD)
e(f's_cmp_eq_u32 {sRole}, 1\ns_cbranch_scc1 L_f1\ns_cmp_eq_u32 {sRole}, 2\ns_cbranch_scc1 L_f2\ns_cmp_eq_u32 {sRole}, 3\ns_cbranch_scc1 L_next')

lp2 = lab('p2')
e(f's_cmp_lg_u32 {sPass}, 0\ns_cbranch_scc1 {lp2}')
tail_to_regs(8)
e(f'{lp2}:')
stamp()
mv, lv = vMM[0], vMM[1]
poll('me', lambda: e(f'buffer_load_dwordx2 {vMM[0:2]}, {vH2ml}, {rWS}, {sLoc} offen sc1'),
     lambda: e(f'v_max_u32 {vT[0]}, {mv}, {lv}\nv_cmp_eq_u32 vcc, -1, {vT[0]}'))
def o_loads():
    for k in range(4): e(f'buffer_load_dwordx4 {vB[4*k:4*k+4]}, {vH2ol}, {rWS}, {sLoc} offen offset:{1024*k} sc1')
def o_first(lchk):
    o_loads()
    mc, ma = vT[4], vT[5]
    e(f'''v_max_f32_dpp {mc}, {mv}, {mv} quad_perm:[1,0,3,2] {DPP}
v_max_f32_dpp {mc}, {mc}, {mc} quad_perm:[2,3,0,1] {DPP}
v_max_f32_dpp {ma}, {mc}, {mc} row_ror:4 {DPP}''')
    for s in wave_reduce('v_max_f32', [ma], start=3): e(s)
    e(f'''v_readlane_b32 {sT0}, {ma}, 63
v_subrev_f32 {mv}, {sT0}, {mv}
v_subrev_f32 {mc}, {sT0}, {mc}
v_exp_f32 {mv}, {mv}
v_exp_f32 {mc}, {mc}
v_mul_f32 {lv}, {mv}, {lv}''')
    for s in wave_reduce('v_add_f32', [lv]): e(s)
    e(f'''v_readlane_b32 {sT0}, {lv}, 63
v_rcp_f32 {lv}, {sT0}
v_mul_f32 {mc}, {mc}, {lv}
v_cvt_pk_bf16_f32 {mc}, {mc}, {mc}''')
    for sg in range(2):
        for r in range(4):
            e(f'v_and_b32_dpp {vAC[4*sg+r]}, {mc}, {vMk1 if r & 1 else vMk0} row_newbcast:{8*sg + 4*(r>>1)} {DPP}')
    e(f's_waitcnt vmcnt(0)\ns_branch {lchk}')
poll('o', o_loads, lambda: sentinel_check([vB[i] for i in range(16)]), first=o_first)
stamp()
e(f'''v_smfmac_f32_16x16x64_bf16 {vD[4:8]}, {vAC[0:4]}, {vB[0:8]}, {vIdx2}
v_smfmac_f32_16x16x64_bf16 {vD[4:8]}, {vAC[4:8]}, {vB[8:16]}, {vIdx2}
v_cvt_pk_bf16_f32 {vT[0]}, {vD[4]}, {vD[5]}
v_cvt_pk_bf16_f32 {vT[1]}, {vD[6]}, {vD[7]}
s_mov_b32 exec_hi, 0
ds_write_b64 {vOW}, {vT[0:2]}
s_mov_b64 exec, {m33}
s_waitcnt lgkmcnt(0)
s_barrier''')
gemv(vOR, 8, aT)
push()
stamp()
e(f's_mov_b32 {sStage}, 0\ns_add_u32 {sT2}, {sG}, {sSel}\ns_add_u32 {sT3}, {sLoc}, {L_H4}')
e('L_red:')
def r_check():
    e(f'v_xor_b32 {vT[0]}, {sH}, {vB[0]}')
    for k, s in ((1, sH1), (2, sH2), (3, sH3)): e(f'v_bitop3_b32 {vT[0]}, {vB[k]}, {s}, {vT[0]} bitop3:0xbe')
    e(f'v_and_b32 {vT[0]}, 0xff, {vT[0]}\nv_cmp_ne_u32 vcc, 0, {vT[0]}')
poll('r', lambda: e(f'buffer_load_dwordx4 {vB[0:4]}, {vRl}, {rWS}, {sT2} offen sc1'), r_check)
for st in (4, 8):
    for k in range(4): e(f'v_add_f32_dpp {vB[k]}, {vB[k]}, {vB[k]} row_ror:{st} {DPP}')
e(f'''v_permlane16_swap_b32 {vB[0]}, {vB[2]}
v_permlane16_swap_b32 {vB[1]}, {vB[3]}
v_add_f32 {vT[0]}, {vB[0]}, {vB[2]}
v_add_f32 {vT[1]}, {vB[1]}, {vB[3]}
v_cvt_pk_bf16_f32 {vT[0]}, {vT[0]}, {vT[1]}
v_and_b32 {vT[1]}, 0xffff0000, {vT[0]}
v_lshlrev_b32 {vT[0]}, 16, {vT[0]}
v_add_f32 {vT[0]}, {vT[0]}, {vXr0}
v_add_f32 {vT[1]}, {vT[1]}, {vXr1}
s_add_u32 {sT0}, {sStage}, {sPass}
s_cmp_eq_u32 {sT0}, 2
v_cvt_pk_bf16_f32 {vT[0]}, {vT[0]}, {vT[1]}
s_cbranch_scc1 L_final''')
mode_store(f'buffer_store_dword {vT[0]}, {vRs}, {rWS}, {sT3} offen')
e(f'''v_and_b32 {vXr1}, 0xffff0000, {vT[0]}
v_lshlrev_b32 {vXr0}, 16, {vT[0]}''')
if opt['stamps']:
    k = nst[0]; nst[0] += 2
    e(f's_memrealtime {sT64}\ns_lshl_b32 {sT0}, {sPass}, 5\ns_add_u32 {sT0}, {sT0}, {sStage}\ns_add_u32 m0, {sT0}, {k}\ns_waitcnt lgkmcnt(0)\nv_writelane_b32 {vSt}, {sT64[0]}, m0')
e(f'''s_cmp_lg_u32 {sStage}, 0
s_cbranch_scc1 L_next
s_mov_b32 {sStage}, 1
s_add_u32 {sT2}, {sT2}, {G_HOP}
s_add_u32 {sT3}, {sLoc}, {L_H7}
s_cmp_eq_u32 {sPass}, 0
s_cbranch_scc1 L_red
s_and_b32 {sT0}, {sTile}, 7
s_cmp_eq_u32 {sT0}, {sA}
s_cbranch_scc1 L_red
s_branch L_exit''')
e('L_final:')
srd(rM, pout[0], pout[1], 1152)
e(f'buffer_store_dword {vT[0]}, {vRs}, {rM}, 0 offen')
e(f'''s_or_b32 {sT0}, {sTile}, {sA}
s_cmp_lg_u32 {sT0}, 0
s_cbranch_scc1 L_fin2
v_mov_b32 {vT[1]}, {sE1}
s_mov_b64 exec, 1
buffer_store_dword {vT[1]}, off, {rWS}, 0 sc1
s_mov_b64 exec, -1
L_fin2:''')
if opt['stamps']:
    e(f's_waitcnt vmcnt(0)\ns_memrealtime {sT64}\ns_waitcnt lgkmcnt(0)\nv_writelane_b32 {vSt}, {sT64[0]}, {32 + k + 1}')
e('s_branch L_exit')

nst[0] = base_st
e('L_f1:')
lp2 = lab('p2')
e(f's_cmp_lg_u32 {sPass}, 0\ns_cbranch_scc1 {lp2}')
dma_tail(18, 9216)
tail_to_regs(9)
e(f'{lp2}:')
stamp()
e(f's_add_u32 {sT2}, {sLoc}, {L_H4}')
poll('x1', lambda: compact_loads(rWS, sT2), lambda: sentinel_check([vX[i] for i in range(8)]))
stamp()
vec_to_lds()
gemv(vXR, 9, aT, fill=stats_list())
h, tt, nn, dd = vT[0], vT[1], vT[4], vT[5]
e(f'''v_add_f32 {h}, {vD[0]}, {vD[1]}
v_add_f32 {tt}, {vD[2]}, {vD[3]}
v_fma_f32 {h}, -{vMean}, {tt}, {h}
v_fma_f32 {h}, {vRstd}, {h}, {vBias}
v_mul_f32 {tt}, {fl(-1.4426950408889634)}, {h}
v_min_f32 {tt}, {tt}, -{tt}
v_exp_f32 {tt}, {tt}
v_cmp_lt_f32 vcc, 0, {h}
s_add_u32 {sT2}, {sLoc}, {L_H5}
v_mul_f32 {dd}, {tt}, {tt}
v_cndmask_b32 {nn}, {dd}, 1.0, vcc
v_cndmask_b32 {dd}, 1.0, {dd}, vcc
v_fma_f32 {nn}, 2.0, {tt}, {nn}
v_fma_f32 {dd}, 2.0, {dd}, {nn}
v_rcp_f32 {dd}, {dd}
v_mul_f32 {h}, {h}, {nn}
v_mul_f32 {h}, {h}, {dd}
v_cvt_pk_bf16_f32 {h}, {h}, {h}''')
mode_store(f'buffer_store_short {h}, {vFs}, {rWS}, {sT2} offen')
stamp()
e('s_branch L_next')

nst[0] = base_st
e('L_f2:')
lp2 = lab('p2')
e(f's_cmp_lg_u32 {sPass}, 0\ns_cbranch_scc1 {lp2}')
dma_tail(18, 1152)
tail_to_regs(9)
e(f'{lp2}:')
stamp()
e(f's_add_u32 {sT2}, {sLoc}, {L_H5}')
poll('ac', lambda: compact_loads(rWS, sT2), lambda: sentinel_check([vX[i] for i in range(8)]))
stamp()
vec_to_lds()
gemv(vXR, 9, aT)
push()
stamp()

e('L_next:')
e(f'''s_cmp_lg_u32 {sPass}, 0
s_cbranch_scc1 L_exit
s_mov_b32 {sPass}, 1
s_add_u32 {sLoc}, {sLoc}, {LOC_PASS}
s_add_u32 {sH1s}, {sH1s}, {H1_PASS}
s_add_u32 {sH1l}, {sH1l}, {H1_PASS}
s_add_u32 {sG}, {sG}, {2 * G_HOP}
s_branch L_top''')
for b in slow: e(b)
e('L_exit:')
if opt['stamps']:
    e(f'''s_lshl2_add_u32 {sT0}, s2, {sW}
s_lshl_b32 {sT0}, {sT0}, 8
s_add_u32 {sT0}, {sT0}, {WS_STAMP}
v_writelane_b32 {vSt}, {sSpin}, 31
v_writelane_b32 {vSt}, {sMode}, 63
v_lshlrev_b32 {vT[0]}, 2, {vL}
buffer_store_dword {vSt}, {vT[0]}, {rWS}, {sT0} offen''')
e('L_end:\ns_endpgm')
acc = (V.next + 3) // 4 * 4
e.raw(f'''.section .rodata,"a"
.p2align 6
.amdhsa_kernel {NAME}_kernel
  .amdhsa_next_free_vgpr {acc + A.next}
  .amdhsa_next_free_sgpr 102
  .amdhsa_accum_offset {acc}
  .amdhsa_group_segment_fixed_size 0
  .amdhsa_kernarg_size 96
  .amdhsa_user_sgpr_count 2
  .amdhsa_user_sgpr_kernarg_segment_ptr 1
  .amdhsa_system_sgpr_workgroup_id_x 1
.end_amdhsa_kernel''')
open(sys.argv[1], 'w').write(e.text())
print('vgpr', V.next, 'agpr', A.next, 'sgpr', S.next, 'pads', e.npad, file=sys.stderr)
```

```python
import sys
N='interleave_layers__sliding_block_cached__dense_activation_mish__decode'
src, out, q, mode = sys.argv[1], sys.argv[2], int(sys.argv[3]), (sys.argv[4] if len(sys.argv)>4 else 'max')
s=open(src).read()
L='; @launch grid=(256,1,1) block=(256,1,1) lds=163840'
main=f'; @launch kernel={N}_kernel grid=(256,1,1) block=(256,1,1) lds=163840'
dec='; @launch kernel=dec_kernel grid=(1,1,1) block=(64,1,1) lds=0'
pre = ''
code = '''
.globl dec_kernel
.p2align 8
.type dec_kernel,@function
dec_kernel:
    s_cmp_ge_u32 s2, 1
    s_cbranch_scc1 L_dec_end
    s_load_dwordx2 s[4:5], s[0:1], 88
    s_waitcnt lgkmcnt(0)
    s_mov_b32 s8, s4
    s_mov_b32 s9, s5
    s_mov_b32 s10, 0x800000
    s_mov_b32 s11, 0x20000
    v_lshlrev_b32 v1, 8, v0
    v_mov_b32 v10, -1
    v_mov_b32 v11, %s
    s_mov_b32 s12, 0x600000
    s_mov_b32 s13, 16
L_dec_loop:
    buffer_load_dword v2, v1, s[8:11], s12 offen offset:120
    buffer_load_dword v3, v1, s[8:11], s12 offen offset:%d
    s_waitcnt vmcnt(0)
    v_min_u32 v10, v10, v2
%s
    s_add_u32 s12, s12, 16384
    s_sub_u32 s13, s13, 1
    s_cmp_lg_u32 s13, 0
    s_cbranch_scc1 L_dec_loop
    s_mov_b32 s14, -1
    s_mov_b32 s15, %s
    s_mov_b32 s13, 0
L_dec_red:
    v_readlane_b32 s16, v10, s13
    v_readlane_b32 s17, v11, s13
    s_min_u32 s14, s14, s16
    %s s15, s15, s17
    s_add_u32 s13, s13, 1
    s_cmp_lt_u32 s13, 64
    s_cbranch_scc1 L_dec_red
    s_sub_u32 s15, s15, s14
    s_min_u32 s15, s15, 10000
    s_mul_i32 s15, s15, 10
    s_memrealtime s[18:19]
    s_waitcnt lgkmcnt(0)
L_dec_spin:
    s_memrealtime s[20:21]
    s_waitcnt lgkmcnt(0)
    s_sub_u32 s22, s20, s18
    s_cmp_lt_u32 s22, s15
    s_cbranch_scc1 L_dec_spin
L_dec_end:
    s_endpgm
''' % (('0', q*4, '    v_max_u32 v11, v11, v3', '0', 's_max_u32') if mode=='max' else
       ('-1', q*4, '    v_add_u32 v3, -1, v3\n    v_min_u32 v11, v11, v3', '-1', 's_min_u32'))
kd='''
.p2align 6
.amdhsa_kernel dec_kernel
  .amdhsa_next_free_vgpr 16
  .amdhsa_next_free_sgpr 32
  .amdhsa_accum_offset 16
  .amdhsa_group_segment_fixed_size 0
  .amdhsa_kernarg_size 96
  .amdhsa_user_sgpr_count 2
  .amdhsa_user_sgpr_kernarg_segment_ptr 1
  .amdhsa_system_sgpr_workgroup_id_x 1
.end_amdhsa_kernel
'''
s=s.replace(L, main+'\n'+dec).replace('.section .rodata,"a"', code+'.section .rodata,"a"')+kd
open(out,'w').write(s)
```

```python
import sys
from emit import Emit, Alloc, R
NAME = 'interleave_layers__sliding_block_cached__dense_activation_mish__decode'
opt = dict(cal=1, nv0=4, nv1=8, nwo=8, pfo=1, pff=1, pfnt=1, g1=0, g2=0, cap1=63, cap2=63, gate=1, touch=1, k0=4, stamps=0, nt=1, wnt=1, dbg=0, sel=0)
for a in sys.argv[2:]:
    k, v = a.split('='); opt[k] = int(v)
NT = ' nt' if opt['nt'] else ''
WNT = ' nt' if opt['wnt'] else ''
PFNT = ' nt' if opt['pfnt'] else ''

WS_HELLO = 0x1000
WS_H1 = 0x20000; H1_PASS = 0x20000
WS_LOC = 0x80000; LOC_XCD = 0xC000; LOC_PASS = 0x6000
L_H2O = 0; L_H2M = 0x4000; L_H4 = 0x4800; L_H5 = 0x5000; L_H7 = 0x5800
WS_G = 0x200000; G_HOP = 18 * 16384
WS_STAMP = 0x600000
WS_SIZE = 0x800000
OOB = 0x40000000
VB = 0; KB = 65536; TB = 65536; WQB = 139264
QB = WQB; PB = WQB + 512; OBUF = WQB + 1536
XB = 157696; XSZ = 1280; MB = XB + 4 * XSZ
CB = MB + 32
LDS_SIZE = 163840
CSC = 0.12751743
import struct
def fl(x): return '0x%08x' % struct.unpack('<I', struct.pack('<f', x))[0]

e = Emit()
S = Alloc('s', 4, 102); V = Alloc('v', 1, 256); A = Alloc('a', 0, 256)
sW = R('s', 3, 1)
sA, sJ, sPass, sMode = [S.get(n) for n in ('a', 'j', 'pass', 'mode')]
rWS, rK, rV, rWQ, rT, rM = [S.get(n, 4, 4) for n in ('rWS', 'rK', 'rV', 'rWQ', 'rT', 'rM')]
sP = S.get('ptr', 16, 4); sQ = S.get('ptr2', 8, 4)
mT = [S.get('mT%d' % t, 2) for t in range(4)]; m33 = S.get('m33', 2); sT64 = S.get('t64', 2); sSt = S.get('st', 2); sSt0 = S.get('st0', 2); sStT = S.get('stt')
(sRole, sC, sH, sH1, sH2, sH3, sHello, sSpin, sFF, sRot, sT0, sT1, sT2, sT3, sLoc, sH1s, sH1l, sG, sSel, sTile, sStage, sE1,
 sM0, sM1, sCa, sCb) = [S.get(n) for n in
  'role c H H1 H2 H3 hello spin ff rot t0 t1 t2 t3 loc h1s h1l g sel tile stage e1 m0v m1v ca cb'.split()]
vL, vN, vKG = V.get('l'), V.get('n'), V.get('kg')
vT = V.get('t', 12, 2)
vX = V.get('x', 8, 4)
vAX = V.get('ax', 36, 4)
vAQ = V.get('aq', 32, 4)
vB = V.get('b', 16, 4)
vAC = V.get('ac', 8, 4)
vD = V.get('d', 8, 4)
vMM = V.get('mm', 10, 4)
vKD = V.get('kd', 4); vVD = V.get('vd', 4)
(vWD, vTD, vWTr, vWTr2, vWTrQ, vXW, vXR, vXRQ, vQW, vQR, vPW, vMR, vOW, vOR, vIdx, vIdx2, vMk0, vMk1, vTag,
 vH1s, vH1l, vH2os, vH2ms, vH2ol, vH2ml, vCl, vCl2, vRl, vRs, vFs, vMean, vRstd, vXr0, vXr1, vBias, vE, vSt, vHl) = [V.get(n) for n in
  'wd td wtr wtr2 wtrq xw xr xrq qw qr pw mr ow or idx idx2 mk0 mk1 tag h1s h1l h2os h2ms h2ol h2ml cl cl2 rl rs fs mean rstd xr0 xr1 bias e st hl'.split()]
vDum = V.get('dum', 1); vKR = V.get('kr', 4); vVR = V.get('vr', 2); vGs = V.get('gs', 2); vP = V.get('p', 2, 2)
aK = A.get('k', 64, 4); aV = A.get('v', 64, 4); aWQ = A.get('wq', 24, 4); aT = A.get('t', 72, 4)

slow = []
cold = []
uid = [0]
def lab(p):
    uid[0] += 1; return f'L_{p}{uid[0]}'

class VM:
    n = 0
    def inc(self, k=1): self.n += k; return self.n - 1
    def wait(self, idx): e(f's_waitcnt vmcnt({self.n - idx - 1})')
vm = VM()

nst = [0]
def stamp():
    if not opt['stamps']: return
    k = nst[0]; nst[0] += 1
    e(f's_memrealtime {sSt}\ns_lshl_b32 {sStT}, {sPass}, 5\ns_add_u32 m0, {sStT}, {k}\ns_waitcnt lgkmcnt(0)\nv_writelane_b32 {vSt}, {sSt[0]}, m0')

def mode_store(txt):
    ls, lb = lab('ms'), lab('mb')
    e(f's_cmp_eq_u32 {sMode}, 0\ns_cbranch_scc1 {ls}')
    e(txt)
    e(f'{lb}:')
    slow.append(f'{ls}:\n' + '\n'.join(t + ' sc1' for t in txt.split('\n')) + f'\ns_branch {lb}')

def poll(p, loads, check, first=None):
    l0, l1, l2 = lab(p + 'l'), lab(p + 'c'), lab(p + 'd')
    if first is not None:
        first(l1)
    e(f'{l0}:'); loads(); e('s_waitcnt vmcnt(0)')
    e(f'{l1}:'); check()
    e(f's_cbranch_vccz {l2}\ns_sub_u32 {sSpin}, {sSpin}, 1\ns_cbranch_scc0 {l0}\ns_mov_b32 {sSpin}, 0')
    e(f'{l2}:')

def sentinel_check(regs):
    r = list(regs); acc = vT[0]
    e(f'v_max3_u32 {acc}, {r[0]}, {r[1]}, {r[2] if len(r) > 2 else r[1]}'); r = r[3:]
    while r:
        e(f'v_max3_u32 {acc}, {acc}, {r[0]}, {r[1] if len(r) > 1 else r[0]}'); r = r[2:]
    e(f'v_cmp_eq_u32 vcc, -1, {acc}')

DPP = 'row_mask:0xf bank_mask:0xf'
def wave_reduce(op, rs, start=0):
    steps = [f'row_ror:1 {DPP}', f'row_ror:2 {DPP}', f'row_ror:4 {DPP}', f'row_ror:8 {DPP}',
             'row_bcast:15 row_mask:0xa bank_mask:0xf', 'row_bcast:31 row_mask:0xc bank_mask:0xf'][start:]
    out = []
    for st in steps:
        for r in rs: out.append(f'{op}_dpp {r}, {r}, {r} {st}')
    return out

def srd(r, lo, hi, size):
    e(f's_mov_b32 {r[0]}, {lo}\ns_mov_b32 {r[1]}, {hi}\ns_mov_b32 {r[2]}, {size}\ns_mov_b32 {r[3]}, 0x20000')

def compact_loads(r, soff, flag=' sc1'):
    e(f'buffer_load_dwordx4 {vX[0:4]}, {vCl}, {r}, {soff} offen{flag}')
    e(f'buffer_load_dwordx4 {vX[4:8]}, {vCl2}, {r}, {soff} offen{flag}')

def vec_to_lds():
    e(f'ds_write_b128 {vXW}, {vX[0:4]}')
    e(f's_mov_b64 exec, 0xffff\nds_write_b128 {vXW}, {vX[4:8]} offset:1024\ns_mov_b64 exec, {m33}')

def stats_list():
    s, q = vT[2], vT[3]
    o = [f'v_mov_b32 {s}, 0', f'v_mov_b32 {q}, 0']
    for i in range(8):
        o.append(f'v_dot2c_f32_bf16 {s}, 0x3f803f80, {vX[i]}')
        o.append(f'v_dot2c_f32_bf16 {q}, {vX[i]}, {vX[i]}')
    o += wave_reduce('v_add_f32', [s, q])
    o += [f'v_readlane_b32 {sT0}, {s}, 63', f'v_readlane_b32 {sT1}, {q}, 63',
          f'v_mov_b32 {s}, {fl(1/576)}',
          f'v_mul_f32 {vMean}, {sT0}, {s}', f'v_mul_f32 {q}, {sT1}, {s}',
          f'v_fma_f32 {q}, -{vMean}, {vMean}, {q}', f'v_max_f32 {q}, 0, {q}',
          f'v_add_f32 {q}, {fl(1e-5)}, {q}', f'v_rsq_f32 {vRstd}, {q}']
    return o

def interleave(mf, fill, per=2):
    fill = list(fill)
    for m in mf:
        e(m)
        for _ in range(per):
            if fill: e(fill.pop(0))
    for f in fill: e(f)

def cal_sample(c):
    if not opt['cal']: return
    l = lab('nc'); d = sCb if c else sCa
    e(f'''s_cmp_lg_u32 {sRole}, 0
s_cbranch_scc1 {l}
s_waitcnt lgkmcnt(0)
s_memtime {sSt}
s_load_dword {sM0}, {sT64}, {c*8192} glc
s_waitcnt lgkmcnt(0)
s_mov_b32 {sT0}, {sSt[0]}
s_memtime {sSt}
s_waitcnt lgkmcnt(0)
s_sub_u32 {sT0}, {sSt[0]}, {sT0}
s_min_u32 {d}, {d}, {sT0}
{l}:''')

def zero(r):
    for i in range(r.n): e(f'v_mov_b32 {r[i]}, 0')

def dma_kv(r, voffs, ldsbase, t):
    e(f's_add_u32 m0, {sT2}, {ldsbase + t * 1024}')
    e(f'buffer_load_dwordx4 {voffs[t & 3]}, {r}, {sRot} offen{NT} lds')
    e(f's_add_u32 {sRot}, {sRot}, 1024\ns_and_b32 {sRot}, {sRot}, 16383')
    return vm.inc()

def dma_tail(k0, n, pitch):
    if n <= k0: return
    e(f's_mul_i32 {sT0}, {sW}, {8 * pitch}\ns_lshl_b32 {sT1}, {sW}, 10\ns_add_u32 m0, {sT1}, {TB + 4096 * k0}')
    if k0: e(f's_add_u32 {sT0}, {sT0}, {32 * pitch * k0}')
    for k in range(k0, n):
        e(f'buffer_load_dwordx4 {vTD}, {rT}, {sT0} offen{WNT} lds')
        if k != n - 1: e(f's_add_u32 {sT0}, {sT0}, {32 * pitch}\ns_add_u32 m0, m0, 4096')

def pf_wo(first, n):
    e(f'''s_mul_i32 {sT0}, {sA}, {512*1152}
s_add_u32 {rM[0]}, {pwo[0]}, {sT0}
s_addc_u32 {rM[1]}, {pwo[1]}, 0
s_mov_b32 {rM[2]}, {512*1152}
s_lshl2_add_u32 {sT0}, {sJ}, {sW}
s_sub_u32 {sT0}, {sT0}, {first}
s_mul_i32 {sT0}, {sT0}, {n*128}
v_lshlrev_b32 {vT[0]}, 7, {vL}
s_bfm_b64 exec, {n}, 0
buffer_load_dword {vDum[0]}, {vT[0]}, {rM}, {sT0} offen{PFNT}
s_mov_b64 exec, -1''')
def pf_w1():
    e(f'''s_mul_i32 {sT0}, {sA}, 1152
s_add_u32 {rM[0]}, {pw1[0]}, {sT0}
s_addc_u32 {rM[1]}, {pw1[1]}, 0
s_mov_b32 {rM[2]}, {575*9216+1152}
s_lshl2_add_u32 {sT0}, {sJ}, {sW}
s_sub_u32 {sT0}, {sT0}, 36
s_mul_i32 {sT0}, {sT0}, 57
v_add_u32 {vT[0]}, {sT0}, {vL}
v_mul_u32_u24 {vT[1]}, 7282, {vT[0]}
v_lshrrev_b32 {vT[1]}, 16, {vT[1]}
v_mul_u32_u24 {vT[6]}, 9, {vT[1]}
v_sub_u32 {vT[0]}, {vT[0]}, {vT[6]}
v_mul_u32_u24 {vT[1]}, 9216, {vT[1]}
v_lshl_add_u32 {vT[0]}, {vT[0]}, 7, {vT[1]}
s_bfm_b64 exec, 57, 0
buffer_load_dword {vDum[0]}, {vT[0]}, {rM}, 0 offen{PFNT}
s_mov_b64 exec, -1''')
def pf_w2():
    e(f'''s_mul_i32 {sT0}, {sA}, {576*1152}
s_add_u32 {rM[0]}, {pw2[0]}, {sT0}
s_addc_u32 {rM[1]}, {pw2[1]}, 0
s_mov_b32 {rM[2]}, {576*1152}
s_lshl2_add_u32 {sT0}, {sJ}, {sW}
s_sub_u32 {sT0}, {sT0}, 72
s_mul_i32 {sT0}, {sT0}, {94*128}
s_add_u32 {sT1}, {sT0}, {47*128}
v_lshlrev_b32 {vT[0]}, 7, {vL}
s_bfm_b64 exec, 47, 0
buffer_load_dword {vDum[0]}, {vT[0]}, {rM}, {sT0} offen{PFNT}
buffer_load_dword {vDum[0]}, {vT[0]}, {rM}, {sT1} offen{PFNT}
s_mov_b64 exec, -1''')

def ffn_tail(pitch, g, cap):
    l0, l1, l2 = lab('fg'), lab('fr'), lab('fd')
    one = f'buffer_load_dwordx4 {vTD}, {rT}, {sT0} offen{WNT} lds\ns_add_u32 {sT0}, {sT0}, {32 * pitch}\ns_add_u32 m0, m0, 4096\ns_add_u32 {sT3}, {sT3}, 1'
    e(f's_mul_i32 {sT0}, {sW}, {8 * pitch}\ns_lshl_b32 {sT1}, {sW}, 10\ns_add_u32 m0, {sT1}, {TB}\ns_mov_b32 {sT3}, 0')
    if opt['gate']:
        e(f'{l0}:\nbuffer_load_dwordx2 {vMM[0:2]}, {vH2ml}, {rWS}, {sLoc} offen sc1')
        for _ in range(g): e(one)
        e(f'''s_waitcnt vmcnt({g})
v_max_u32 {vT[0]}, {vMM[0]}, {vMM[1]}
v_cmp_eq_u32 vcc, -1, {vT[0]}
s_cbranch_vccz {l1}''')
        if g:
            e(f's_cmp_le_u32 {sT3}, {18 - g}\ns_cbranch_scc1 {l0}')
        else:
            e(f's_sub_u32 {sSpin}, {sSpin}, 1\ns_cbranch_scc0 {l0}\ns_mov_b32 {sSpin}, 0')
    e(f'{l1}:\ns_cmp_ge_u32 {sT3}, 18\ns_cbranch_scc1 {l2}')
    e(one)
    if cap < 63: e(f's_waitcnt vmcnt({cap})')
    e(f's_branch {l1}\n{l2}:')

def tail_to_regs(steps, wait=True):
    if wait: e('s_waitcnt vmcnt(0)\ns_barrier')
    for t in range(steps):
        for p in range(4):
            off = t * 8192 + (p >> 1) * 4096 + (p & 1) * 256
            ad = vWTr if off < 65536 else vWTr2
            e(f'ds_read_b64_tr_b16 {aT[8*t+2*p:8*t+2*p+2]}, {ad} offset:{off & 65535}')
    e('s_waitcnt lgkmcnt(0)')

def gemv(addr, steps, w, fill=()):
    for t in range(steps): e(f'ds_read_b128 {vAX[4*t:4*t+4]}, {addr} offset:{t*128}')
    e('s_mov_b64 exec, -1')
    mf = []
    for t in range(steps):
        mf.append(f's_waitcnt lgkmcnt({steps-1-t})\nv_smfmac_f32_16x16x64_bf16 {vD[0:4]}, {vAX[4*t:4*t+4]}, {w[8*t:8*t+8]}, {vIdx}')
    interleave(mf, fill, per=3)

def push():
    e(f'v_add_f32 {vT[0]}, {vD[0]}, {vD[1]}')
    e(f'v_bfi_b32 {vT[0]}, {sFF}, {vTag}, {vT[0]}')
    e(f's_add_u32 {sT0}, {sG}, 8192')
    for cp in (sG, sT0):
        for h in range(2): e(f'buffer_store_dword {vT[0]}, {vGs[h]}, {rWS}, {cp} offen sc1')

hdr = open('cdna_kernels/' + NAME + '.s.ref').read().split('; Override launch')[0]
e.raw(hdr.rstrip())
e.raw(f'; @launch grid=(256,1,1) block=(256,1,1) lds={LDS_SIZE}')
e.raw('.amdgcn_target "amdgcn-amd-amdhsa--gfx950"\n.text')
e.raw(f'.globl {NAME}_kernel\n.p2align 8\n.type {NAME}_kernel,@function\n{NAME}_kernel:')
t0, t1, t2, t3, t4, t5 = [vT[i] for i in range(6)]
if opt['stamps']: e(f's_memrealtime {sSt0}')
e(f'''s_cmp_ge_u32 s2, 256
s_cbranch_scc1 L_end
s_load_dwordx16 {sP}, s[0:1], 0
s_load_dwordx8 {sQ}, s[0:1], 64
s_getpc_b64 {sT64}
L_pc:
v_lshlrev_b32 {t1}, 7, v0
v_min_u32 {t1}, L_end-L_pc, {t1}
global_load_dword {vDum[0]}, {t1}, {sT64}
v_lshrrev_b32 {t0}, 6, v0
v_and_b32 {vL}, 63, v0
v_readfirstlane_b32 {sW}, {t0}
s_and_b32 {sA}, s2, 7
s_lshr_b32 {sJ}, s2, 3
v_and_b32 {vN}, 15, {vL}
v_lshrrev_b32 {vKG}, 4, {vL}
s_mov_b32 {sPass}, 0
s_mov_b32 {sMode}, 0
s_mov_b32 {sSpin}, 400000
s_mov_b32 {sFF}, 0xff''')
vm.inc()
if opt['stamps']:
    e(f'v_mov_b32 {vSt}, 0');
for tau in range(4):
    e(f'v_add_u32 {t0}, {4*tau}, {vKG}\nv_xor_b32 {t0}, {t0}, {vN}\nv_lshlrev_b32 {t0}, 4, {t0}\nv_lshl_add_u32 {vKD[tau]}, {vKG}, 8, {t0}')
e(f'''s_and_b32 {sT0}, {sW}, 1
s_lshl_b32 {sT0}, {sT0}, 2
v_lshrrev_b32 {t1}, 5, {vL}
v_lshl_add_u32 {t1}, {t1}, 1, {sT0}
v_and_b32 {t2}, 7, {vL}
v_xor_b32 {t2}, {t2}, {t1}
v_lshlrev_b32 {t2}, 4, {t2}
v_lshrrev_b32 {t3}, 3, {vL}
v_lshl_add_u32 {vWD}, {t3}, 13, {t2}
v_lshlrev_b32 {vCl}, 4, {vL}
v_add_u32 {vCl2}, 1024, {vCl}
v_mov_b32 {t4}, {OOB}
v_cmp_gt_u32 vcc, 8, {vL}
v_cndmask_b32 {vCl2}, {t4}, {vCl2}, vcc''')
e(f'''s_mul_i32 {sRole}, {sJ}, 57
s_lshr_b32 {sRole}, {sRole}, 9
s_mul_i32 {sT0}, {sRole}, 9
s_sub_u32 {sC}, {sJ}, {sT0}
s_lshl_b32 {sTile}, {sC}, 2
s_add_u32 {sTile}, {sTile}, {sW}
s_and_b32 {sRot}, {sJ}, 3
s_lshl_b32 {sRot}, {sRot}, 12''')
e(f'''s_lshr_b32 {sT0}, {sJ}, 4
s_lshl1_add_u32 {sT0}, {sA}, {sT0}
s_lshl_b32 {sT0}, {sT0}, 23
s_and_b32 {sT1}, {sJ}, 15
s_lshl_b32 {sT1}, {sT1}, 16
s_add_u32 {sT0}, {sT0}, {sT1}
s_lshl_b32 {sT2}, {sW}, 14
s_add_u32 {sT0}, {sT0}, {sT2}
s_add_u32 {sT0}, {sT0}, {28672*256}''')
e(f'''s_and_b32 {sT1}, {sJ}, 3
s_mul_i32 {sT1}, {sT1}, {144*8192}
s_lshr_b32 {sT3}, {sJ}, 2
s_lshl_b32 {sT3}, {sT3}, 7
s_add_u32 {sT1}, {sT1}, {sT3}
s_lshl_b32 {sT3}, {sA}, 10
s_add_u32 {sT1}, {sT1}, {sT3}
s_mul_i32 {sLoc}, {sA}, {LOC_XCD}
s_add_u32 {sLoc}, {sLoc}, {WS_LOC}
s_waitcnt lgkmcnt(0)''')
px, pk, pv, pwq, pwo, pbx, pw1, pb1 = [sP[2*i:2*i+2] for i in range(8)]
pw2, pout, pdbg, pws = [sQ[2*i:2*i+2] for i in range(4)]
e(f's_add_u32 {rK[0]}, {pk[0]}, {sT0}\ns_addc_u32 {rK[1]}, {pk[1]}, 0\ns_mov_b32 {rK[2]}, 16384\ns_mov_b32 {rK[3]}, 0x20000')
iK = []
for t in range(opt['k0']): iK.append(dma_kv(rK, vKD, KB, t))
srd(rWS, pws[0], pws[1], WS_SIZE)
srd(rM, px[0], px[1], 1152)
e(f'buffer_load_dword {vE}, off, {rWS}, 0 sc1'); iE = vm.inc()
compact_loads(rM, 0, ''); iX = vm.inc(2) + 1
e(f's_add_u32 {rWQ[0]}, {pwq[0]}, {sT1}\ns_addc_u32 {rWQ[1]}, {pwq[1]}, 0\ns_mov_b32 {rWQ[2]}, {143*8192+128}\ns_mov_b32 {rWQ[3]}, 0x20000')
e(f's_add_u32 {rV[0]}, {pv[0]}, {sT0}\ns_addc_u32 {rV[1]}, {pv[1]}, 0\ns_mov_b32 {rV[2]}, 16384\ns_mov_b32 {rV[3]}, 0x20000')
e(f's_lshl_b32 {sT0}, {sW}, 16\ns_lshl_b32 {sT1}, {sW}, 10\ns_add_u32 m0, {sT1}, {WQB}')
for k in range(5):
    if k == 4:
        e(f's_and_b32 {sT1}, {sW}, 1\ns_add_u32 {sT1}, {sT1}, 16\ns_lshl_b32 {sT0}, {sT1}, 16\ns_lshl_b32 {sT1}, {sT1}, 10\ns_add_u32 m0, {sT1}, {WQB}')
    e(f'buffer_load_dwordx4 {vWD}, {rWQ}, {sT0} offen{WNT} lds'); iWQ = vm.inc()
    if k < 3: e(f's_add_u32 {sT0}, {sT0}, {32*8192}\ns_add_u32 m0, m0, 4096')
e(f'''s_lshl2_add_u32 {sT0}, {sJ}, {sW}
s_mul_i32 {sT0}, {sT0}, 384
s_add_u32 {sT0}, {sT0}, {sLoc}
v_mov_b32 {vB[0]}, -1
v_mov_b32 {vB[1]}, -1
v_mov_b32 {vB[2]}, -1
v_mov_b32 {vB[3]}, -1
v_cmp_gt_u32 vcc, 24, {vL}
v_cndmask_b32 {t0}, {t4}, {vCl}, vcc
buffer_store_dwordx4 {vB[0:4]}, {t0}, {rWS}, {sT0} offen sc1'''); iClr = vm.inc()
for t in range(opt['k0'], 6): iK.append(dma_kv(rK, vKD, KB, t))
stamp()
e(f'''v_and_b32 {t0}, 3, {vL}
v_lshlrev_b32 {t0}, 3, {t0}
v_and_b32 {t1}, 1, {vKG}
v_lshl_add_u32 {t0}, {t1}, 2, {t0}
s_lshl_b32 {sT0}, {sTile}, 5
v_add_u32 {t0}, {sT0}, {t0}
buffer_load_dword {vXr0}, {t0}, {rM}, 0 offen
v_and_b32 {t1}, 0x2c, {vL}
v_cmp_eq_u32 vcc, 0, {t1}
v_cndmask_b32 {vRs}, {t4}, {t0}, vcc'''); iXr = vm.inc()
e(f'''s_mov_b32 {rM[0]}, {pb1[0]}
s_mov_b32 {rM[1]}, {pb1[1]}
s_mov_b32 {rM[2]}, 9216
v_lshl_add_u32 {t0}, {vN}, 1, {sT0}
s_mul_i32 {sT1}, {sA}, 1152
buffer_load_ushort {vBias}, {t0}, {rM}, {sT1} offen
v_cmp_gt_u32 vcc, 16, {vL}
v_cndmask_b32 {vFs}, {t4}, {t0}, vcc'''); iBias = vm.inc()
e(f'''s_cmp_eq_u32 {sRole}, 1
s_cselect_b32 {rT[0]}, {pw1[0]}, {pw2[0]}
s_cselect_b32 {rT[1]}, {pw1[1]}, {pw2[1]}
s_mov_b32 {sT0}, {576*1152}
s_mov_b32 {sT1}, 1152
s_mov_b32 {rT[2]}, {575*1152+128}
s_cselect_b32 {sT0}, 1152, {sT0}
s_cselect_b32 {sT1}, 9216, {sT1}
s_cselect_b32 {rT[2]}, {575*9216+128}, {rT[2]}
s_cmp_eq_u32 {sRole}, 0
s_cselect_b32 {rT[0]}, {pwo[0]}, {rT[0]}
s_cselect_b32 {rT[1]}, {pwo[1]}, {rT[1]}
s_cselect_b32 {sT0}, {512*1152}, {sT0}
s_cselect_b32 {rT[2]}, {511*1152+128}, {rT[2]}
s_mul_i32 {sT0}, {sT0}, {sA}
s_lshl_b32 {sT3}, {sC}, 7
s_add_u32 {sT0}, {sT0}, {sT3}
s_add_u32 {rT[0]}, {rT[0]}, {sT0}
s_addc_u32 {rT[1]}, {rT[1]}, 0
s_mov_b32 {rT[3]}, 0x20000
v_mul_lo_u32 {vTD}, {t3}, {sT1}
v_add_u32 {vTD}, {vTD}, {t2}''')
for t in range(4):
    e(f's_mov_b32 {mT[t][0]}, {0x000F000F << (4*t)}\ns_mov_b32 {mT[t][1]}, {0x000F000F << (4*t)}')
e(f's_mov_b32 {m33[0]}, 0x33333333\ns_mov_b32 {m33[1]}, 0x33333333')
for tau in range(4):
    e(f'v_and_b32 {t0}, 1, {vKG}\nv_lshlrev_b32 {t0}, 1, {t0}\nv_or_b32 {t0}, {tau << 2}, {t0}\nv_xor_b32 {t0}, {t0}, {vN}\nv_lshlrev_b32 {t0}, 4, {t0}\nv_lshl_add_u32 {vVD[tau]}, {vKG}, 8, {t0}')
e(f's_add_u32 {sT0}, {sT2}, {KB}')
for q in range(4):
    e(f'v_add_u32 {t0}, {4*q}, {vKG}\nv_xor_b32 {t0}, {t0}, {vN}\nv_lshlrev_b32 {t0}, 4, {t0}\nv_lshl_add_u32 {t0}, {vN}, 8, {t0}\nv_add_u32 {vKR[q]}, {sT0}, {t0}')
e(f'''v_lshrrev_b32 {t0}, 5, {vL}
v_lshlrev_b32 {t0}, 4, {t0}
v_and_b32 {t1}, 1, {vKG}
v_lshl_add_u32 {t0}, {t1}, 2, {t0}
v_bfe_u32 {t2}, {vL}, 2, 1
v_add_u32 {t0}, {t0}, {t2}
v_bfe_u32 {t3}, {vL}, 3, 1
v_lshl_add_u32 {t0}, {t3}, 3, {t0}
v_lshl_add_u32 {t1}, {t3}, 1, {t1}
v_and_b32 {t3}, 3, {vL}
v_lshlrev_b32 {t3}, 3, {t3}
v_xor_b32 {t5}, {sW}, {t1}
v_lshl_add_u32 {t5}, {t5}, 5, {t3}
v_lshl_add_u32 {t5}, {t0}, 7, {t5}
v_add_u32 {vWTr}, {TB}, {t5}
v_add_u32 {vWTr2}, {TB + 65536}, {t5}
v_add_u32 {vWTrQ}, {WQB}, {t5}
v_lshl_add_u32 {t1}, {t1}, 1, {t2}
s_lshl_b32 {sT0}, {sW}, 1
v_xor_b32 {t1}, {sT0}, {t1}
v_lshl_add_u32 {t0}, {t0}, 8, {t3}
v_lshl_add_u32 {vVR[0]}, {t1}, 5, {t0}
v_xor_b32 {t1}, 1, {t1}
v_lshl_add_u32 {vVR[1]}, {t1}, 5, {t0}''')
e(f'''s_mul_i32 {sT0}, {sW}, {XSZ}
s_add_u32 {sT0}, {sT0}, {XB}
v_add_u32 {vXW}, {sT0}, {vCl}
v_and_b32 {t0}, 1, {vL}
v_lshlrev_b32 {t0}, 4, {t0}
v_lshl_add_u32 {t0}, {vKG}, 5, {t0}
v_add_u32 {vXR}, {sT0}, {t0}
s_and_b32 {sT1}, {sJ}, 3
s_mul_i32 {sT1}, {sT1}, 288
v_add_u32 {vXRQ}, {sT1}, {vXR}
v_add_u32 {vOR}, {OBUF}, {t0}
v_bfe_u32 {t1}, {vL}, 1, 1
v_lshl_add_u32 {t0}, {t1}, 7, {t0}
v_add_u32 {vQR}, {QB}, {t0}
v_lshlrev_b32 {t0}, 5, {vKG}
v_lshl_add_u32 {t0}, {t1}, 4, {t0}
v_bfe_u32 {t1}, {vL}, 2, 2
v_lshl_add_u32 {t0}, {t1}, 2, {t0}
v_and_b32 {t1}, 1, {vL}
v_lshl_add_u32 {t0}, {t1}, 1, {t0}
s_and_b32 {sT0}, {sW}, 1
s_lshl_b32 {sT0}, {sT0}, 8
s_lshr_b32 {sT1}, {sW}, 1
s_lshl_b32 {sT1}, {sT1}, 7
s_add_u32 {sT0}, {sT0}, {sT1}
s_add_u32 {sT0}, {sT0}, {QB}
v_add_u32 {vQW}, {sT0}, {t0}
s_lshl_b32 {sT0}, {sW}, 8
s_add_u32 {sT1}, {sT0}, {PB}
v_lshl_add_u32 {vPW}, {vL}, 1, {sT1}
v_lshlrev_b32 {t0}, 3, {vKG}
v_add_u32 {vMR}, {MB}, {t0}
s_add_u32 {sT1}, {sT0}, {OBUF}
v_and_b32 {t0}, 8, {t0}
v_lshl_add_u32 {t0}, {vN}, 4, {t0}
v_add_u32 {vOW}, {sT1}, {t0}''')
e(f'''v_and_b32 {t0}, 1, {vL}
v_mov_b32 {t1}, 0xaaaa
v_mul_u32_u24 {t1}, {t0}, {t1}
v_add_u32 {vIdx}, 0x4444, {t1}
v_and_b32 {t0}, 3, {vL}
v_xor_b32 {t1}, 1, {t0}
v_lshl_add_u32 {t0}, {t1}, 2, {t0}
v_mul_u32_u24 {vIdx2}, 0x1111, {t0}
v_bfe_u32 {t0}, {vL}, 2, 1
v_mul_u32_u24 {vMk1}, 0xffff, {t0}
v_xor_b32 {vMk0}, 0xffff, {vMk1}''')
e(f'''v_lshlrev_b32 {vH1l}, 3, {vL}
v_cmp_gt_u32 vcc, 16, {vL}
v_cndmask_b32 {vH1s}, {t4}, {vH1l}, vcc
s_lshl_b32 {sT0}, {sA}, 14
s_add_u32 {sT0}, {sT0}, {WS_H1}
s_lshl_b32 {sT1}, {sJ}, 9
s_add_u32 {sH1s}, {sT0}, {sT1}
s_lshl_b32 {sT1}, {sW}, 7
s_add_u32 {sH1s}, {sH1s}, {sT1}
s_lshr_b32 {sT1}, {sJ}, 4
s_lshl2_add_u32 {sT3}, {sT1}, {sW}
s_lshl_b32 {sT3}, {sT3}, 11
s_add_u32 {sH1l}, {sT0}, {sT3}
s_lshl_b32 {sT1}, {sT1}, 1
s_and_b32 {sT0}, {sJ}, 15
v_lshrrev_b32 {t0}, 5, {vL}
v_add_u32 {t0}, {sT1}, {t0}
v_and_b32 {t1}, 31, {vL}
v_lshlrev_b32 {vHl}, 2, {t1}
v_lshlrev_b32 {t1}, 1, {t1}
v_lshl_add_u32 {t1}, {t0}, 12, {t1}
s_lshl_b32 {sT3}, {sT0}, 2
s_add_u32 {sT3}, {sT3}, {sW}
s_lshl_b32 {sE1}, {sT3}, 6
v_add_u32 {vH2os}, {sE1}, {t1}
v_add_u32 {t0}, {sT1}, {vL}
v_lshlrev_b32 {t0}, 9, {t0}
s_lshl_b32 {sE1}, {sT3}, 3
s_add_u32 {sE1}, {sE1}, {L_H2M}
v_add_u32 {t0}, {sE1}, {t0}
v_cmp_gt_u32 vcc, 2, {vL}
v_cndmask_b32 {vH2ms}, {t4}, {t0}, vcc
s_lshl_b32 {sT0}, {sW}, 12
v_add_u32 {vH2ol}, {sT0}, {vCl}
v_lshrrev_b32 {t0}, 3, {vN}
v_lshlrev_b32 {t0}, 3, {t0}
v_lshl_add_u32 {t0}, {vKG}, 1, {t0}
v_bfe_u32 {t1}, {vL}, 2, 1
v_add_u32 {t0}, {t0}, {t1}
v_and_b32 {t1}, 3, {vL}
v_lshlrev_b32 {t1}, 3, {t1}
v_lshl_add_u32 {t0}, {t0}, 5, {t1}
s_lshl_b32 {sT0}, {sW}, 9
s_add_u32 {sT0}, {sT0}, {L_H2M}
v_add_u32 {vH2ml}, {sT0}, {t0}''')
def chunked(dst, lin):
    e(f'v_lshrrev_b32 {t5}, 13, {lin}\nv_lshlrev_b32 {t5}, 13, {t5}\nv_add_u32 {dst}, {t5}, {lin}')
for h in range(2):
    e(f'''v_add_u32 {t0}, {4*h}, {vKG}
v_mul_u32_u24 {t0}, 36, {t0}
v_add_u32 {t0}, {sTile}, {t0}
v_lshlrev_b32 {t0}, 9, {t0}
s_lshl_b32 {sT0}, {sA}, 6
v_lshl_add_u32 {t1}, {vN}, 2, {sT0}
v_add_u32 {t0}, {t0}, {t1}''')
    chunked(vGs[h], t0)
e(f'''s_mul_i32 {sT0}, {sA}, 36
s_add_u32 {sT0}, {sT0}, {sTile}
s_lshl_b32 {sT0}, {sT0}, 9
v_and_b32 {t0}, 31, {vL}
v_lshl_add_u32 {t0}, {t0}, 4, {sT0}''')
chunked(vRl, t0)
e(f'''s_add_u32 {sG}, {pws[0]}, 0x1fffff
s_and_b32 {sG}, {sG}, 0xffe00000
s_sub_u32 {sG}, {sG}, {pws[0]}
s_add_u32 {sG}, {sG}, {WS_G}
s_mov_b32 {sSel}, {opt['sel'] * 8192}
s_cmp_eq_u32 {sRole}, 2
s_cselect_b32 {sT0}, {G_HOP}, 0
s_add_u32 {sG}, {sG}, {sT0}''')
if opt['cal']:
    e(f'''v_readfirstlane_b32 {sT0}, {vRl}
s_add_u32 {sT0}, {sT0}, {sG}
s_add_u32 {sT64[0]}, {pws[0]}, {sT0}
s_addc_u32 {sT64[1]}, {pws[1]}, 0
s_load_dword {sM0}, {sT64}, 0 glc
s_load_dword {sM1}, {sT64}, 8192 glc
s_mov_b32 {sCa}, -1
s_mov_b32 {sCb}, -1''')
for i in range(36): e(f'v_mov_b32 {vAX[i]}, 0x3f803f80')
zero(vAQ); zero(vD[0:4])
vm.wait(iE)
e(f'''v_readfirstlane_b32 {sE1}, {vE}
s_getreg_b32 {sT0}, hwreg(HW_REG_XCC_ID, 0, 4)
s_add_u32 {sE1}, {sE1}, 1
s_mul_i32 {sH}, {sE1}, 0x01010101
s_lshr_b32 {sH1}, {sH}, 8
s_lshr_b32 {sH2}, {sH}, 16
s_lshr_b32 {sH3}, {sH}, 24
s_andn2_b32 {sHello}, {sH}, 15
s_or_b32 {sHello}, {sHello}, {sT0}
v_and_b32 {t0}, 3, {vL}
v_lshlrev_b32 {t0}, 3, {t0}
v_bfe_u32 {vTag}, {sH}, {t0}, 8''')
for t in range(6, 9): iK.append(dma_kv(rK, vKD, KB, t))
cal_sample(0)
vm.wait(iClr)
e('s_waitcnt lgkmcnt(0)')
for t in range(9, 12): iK.append(dma_kv(rK, vKD, KB, t))
e('s_barrier')
stamp()
e(f'''s_lshl_b32 {sT0}, {sA}, 7
s_lshl2_add_u32 {sT0}, {sJ}, {sT0}
s_add_u32 {sT0}, {sT0}, {WS_HELLO}
v_mov_b32 {t0}, {sHello}
v_cmp_eq_u32 vcc, 0, v0
v_cndmask_b32 {t1}, {t4}, v0, vcc
buffer_store_dword {t0}, {t1}, {rWS}, {sT0} offen sc1'''); vm.inc()
for t in range(3):
    for p in range(4 if t < 2 else 2):
        e(f'ds_read_b64_tr_b16 {aWQ[8*t+2*p:8*t+2*p+2]}, {vWTrQ} offset:{t*8192 + (p>>1)*4096 + (p&1)*256}')
for i in range(4): e(f'v_accvgpr_write_b32 {aWQ[20+i]}, 0')
e('s_waitcnt lgkmcnt(0)')
e('s_mov_b32 exec_lo, 0')
for i in range(4): e(f'v_accvgpr_write_b32 {aWQ[16+i]}, 0')
e('s_mov_b32 exec_lo, -1\ns_barrier\ns_branch L_q')

e('L_top:')
zero(vD[0:4])
e(f's_add_u32 {sT2}, {sLoc}, {L_H7 - LOC_PASS}')
poll('x', lambda: compact_loads(rWS, sT2), lambda: sentinel_check([vX[i] for i in range(8)]))
e('L_q:')
stamp()
vec_to_lds()
gemv(vXRQ, 3, aWQ)
e(f'''v_add_f32 {vT[0]}, {vD[0]}, {vD[1]}
v_add_f32 {vT[1]}, {vD[2]}, {vD[3]}
v_bfi_b32 {vT[0]}, {sFF}, {vTag}, {vT[0]}
v_bfi_b32 {vT[1]}, {sFF}, {vTag}, {vT[1]}''')
mode_store(f'buffer_store_dwordx2 {vT[0:2]}, {vH1s}, {rWS}, {sH1s} offen'); vm.inc()
stamp()
for s in stats_list(): e(s)
zero(vD)
def h1_loads():
    for k in range(4): e(f'buffer_load_dwordx2 {vB[2*k:2*k+2]}, {vH1l}, {rWS}, {sH1l} offen offset:{512*k} sc1')
def h1_check():
    e(f'v_xor_b32 {vT[0]}, {vB[0]}, {vTag}')
    for k in range(1, 8): e(f'v_bitop3_b32 {vT[0]}, {vB[k]}, {vTag}, {vT[0]} bitop3:0xbe')
    e(f'v_and_b32 {vT[0]}, 0xff, {vT[0]}\nv_cmp_ne_u32 vcc, 0, {vT[0]}')
def kreads(t):
    for q in range(4): e(f'ds_read_b128 {aK[16*t+4*q:16*t+4*q+4]}, {vKR[q]} offset:{t*4096}')
def hello_load(): e(f'buffer_load_dword {vE}, {vHl}, {rWS}, {sT1} offen sc1')
def h1_first(lchk):
    lc = lab('c1')
    e(f's_cmp_eq_u32 {sPass}, 0\ns_cbranch_scc1 {lc}')
    sv = (e.out, e.hist); e.out, e.hist = [], []
    e(f'{lc}:\ns_lshl_b32 {sT2}, {sW}, 14')
    for t in range(12, 16): iK.append(dma_kv(rK, vKD, KB, t))
    if opt['pfo'] == 2: pf_wo(0, 36); vm.inc()
    cal_sample(1)
    vm.wait(iK[7]); kreads(0); kreads(1)
    e(f'v_lshlrev_b32 {vBias}, 16, {vBias}\nv_and_b32 {vXr1}, 0xffff0000, {vXr0}\nv_lshlrev_b32 {vXr0}, 16, {vXr0}')
    nv0, nv1 = opt['nv0'], opt['nv1']
    for t in range(0, nv0 // 2): dma_kv(rV, vVD, VB, t)
    cal_sample(0)
    vm.wait(iK[11]); kreads(2)
    for t in range(nv0 // 2, nv0): dma_kv(rV, vVD, VB, t)
    cal_sample(1)
    if opt['cal']:
        e(f'''s_lshl_b32 {sT0}, {sW}, 3
s_add_u32 {sT0}, {sT0}, {CB}
v_mov_b32 {vT[0]}, {sT0}
v_mov_b32 {vT[6]}, {sCa}
v_mov_b32 {vT[7]}, {sCb}
ds_write_b64 {vT[0]}, {vT[6:8]}''')
    vm.wait(iK[15]); kreads(3)
    e('s_waitcnt lgkmcnt(0)\ns_barrier')
    stamp()
    e(f's_lshl_b32 {sT1}, {sA}, 7\ns_add_u32 {sT1}, {sT1}, {WS_HELLO}')
    hello_load(); h1_loads()
    nt = 0
    if opt['touch']:
        e(f'''s_lshl2_add_u32 {sT0}, {sJ}, {sW}
s_mul_i32 {sT0}, {sT0}, 384
s_add_u32 {sT0}, {sT0}, {sLoc}
v_lshl_add_u32 {vT[0]}, {vL}, 7, {sT0}
s_add_u32 {sT0}, {sH1s}, {H1_PASS}
v_writelane_b32 {vT[0]}, {sT0}, 3
s_mov_b64 exec, 15
buffer_load_dword {vDum[0]}, {vT[0]}, {rWS}, 0 offen sc1
s_mov_b64 exec, -1''')
        nt = 1
    lo, lj = lab('co'), lab('cj')
    e(f's_cmp_eq_u32 {sRole}, 0\ns_cbranch_scc1 {lo}')
    rot = None
    for t in range(nv0, nv0 + nv1): dma_kv(rV, vVD, VB, t)
    e(f's_waitcnt vmcnt({nv1 + nt})')
    if opt['pfo'] == 3: pf_wo(36, 51)
    for t in range(nv0 + nv1, 16): dma_kv(rV, vVD, VB, t)
    if opt['pfo'] == 1: pf_wo(36, 51)
    if opt['pff']:
        pf_w1()
    e(f's_branch {lj}')
    e(f'{lo}:')
    if opt['cal']:
        e(f'''v_mov_b32 {vT[0]}, {CB}
ds_read_b128 {vMM[0:4]}, {vT[0]}
ds_read_b128 {vMM[4:8]}, {vT[0]} offset:16
s_waitcnt lgkmcnt(0)
v_min3_u32 {vT[0]}, {vMM[0]}, {vMM[2]}, {vMM[4]}
v_min3_u32 {vT[1]}, {vMM[1]}, {vMM[3]}, {vMM[5]}
v_min_u32 {vT[0]}, {vT[0]}, {vMM[6]}
v_min_u32 {vT[1]}, {vT[1]}, {vMM[7]}
v_cmp_lt_u32 vcc, {vT[1]}, {vT[0]}
s_cmp_lg_u64 vcc, 0
s_cselect_b32 {sSel}, 8192, 0''')
        if opt['stamps']: e(f'v_writelane_b32 {vSt}, {sSel}, 29')
    if opt['touch']:
        e(f'''v_bfe_u32 {vT[0]}, {vL}, 2, 2
v_mul_u32_u24 {vT[0]}, {G_HOP}, {vT[0]}
v_and_b32 {vT[1]}, 3, {vL}
v_readfirstlane_b32 {sT0}, {vRl}
v_lshl_add_u32 {vT[0]}, {vT[1]}, 7, {vT[0]}
s_add_u32 {sT0}, {sT0}, {sG}
s_add_u32 {sT0}, {sT0}, {sSel}
s_mov_b64 exec, 0xffff
buffer_load_dword {vDum[0]}, {vT[0]}, {rWS}, {sT0} offen sc1
s_mov_b64 exec, -1''')
        nt = 2
    for t in range(nv0, nv0 + nv1): dma_kv(rV, vVD, VB, t)
    e(f's_waitcnt vmcnt({nv1 + nt})')
    for t in range(nv0 + nv1, 16): dma_kv(rV, vVD, VB, t)
    e(f'{lj}:')
    def hello_check():
        e(f'v_xor_b32 {vT[0]}, {sH}, {vE}\nv_cmp_lt_u32 vcc, 15, {vT[0]}')
    poll('he', hello_load, hello_check, first=lambda l: e(f's_branch {l}'))
    e(f'v_cmp_ne_u32 vcc, {sHello}, {vE}\ns_cmp_eq_u64 vcc, 0\ns_cselect_b32 {sMode}, 1, 0')
    e(f's_branch {lchk}')
    cold.append(e.out); e.out, e.hist = sv
poll('h1', h1_loads, h1_check, first=h1_first)
stamp()
e(f'''v_add_f32 {vT[0]}, {vB[0]}, {vB[2]}
v_add_f32 {vT[1]}, {vB[1]}, {vB[3]}
v_add_f32 {vT[2]}, {vB[4]}, {vB[6]}
v_add_f32 {vT[3]}, {vB[5]}, {vB[7]}
v_add_f32 {vT[0]}, {vT[0]}, {vT[2]}
v_add_f32 {vT[1]}, {vT[1]}, {vT[3]}
v_fma_f32 {vT[0]}, -{vMean}, {vT[1]}, {vT[0]}
v_mul_f32 {vT[0]}, {vRstd}, {vT[0]}
v_cvt_pk_bf16_f32 {vT[0]}, {vT[0]}, {vT[0]}
ds_write_b16 {vQW}, {vT[0]}
s_waitcnt lgkmcnt(0)
s_barrier''')
for t in range(4):
    e(f's_mov_b64 exec, {mT[t]}')
    for s in range(2): e(f'ds_read_b128 {vAQ[16*s+4*t:16*s+4*t+4]}, {vQR} offset:{256*s}')
e('s_mov_b64 exec, -1')
for t in range(4):
    for s in range(2):
        e(f's_waitcnt lgkmcnt({7-2*t-s})\nv_smfmac_f32_16x16x64_bf16 {vD[0:4]}, {vAQ[16*s+4*t:16*s+4*t+4]}, {aK[16*t+8*s:16*t+8*s+8]}, {vIdx}')
p0, p1 = vP[0], vP[1]
e(f'''v_add_f32 {p0}, {vD[0]}, {vD[1]}
v_add_f32 {p1}, {vD[2]}, {vD[3]}
v_mul_f32 {p0}, {fl(CSC)}, {p0}
v_mul_f32 {p1}, {fl(CSC)}, {p1}
v_max_f32_dpp {vT[0]}, {p0}, {p0} row_ror:1 {DPP}
v_max_f32_dpp {vT[1]}, {p1}, {p1} row_ror:1 {DPP}''')
fill = [f'v_mov_b32 {vD[i]}, 0' for i in range(4)]
red = wave_reduce('v_max_f32', [vT[0], vT[1]], start=1)
for i in range(0, len(red), 2):
    if fill: e(fill.pop(0))
    e(red[i]); e(red[i+1])
e(f'''v_readlane_b32 {sM0}, {vT[0]}, 63
v_readlane_b32 {sM1}, {vT[1]}, 63
v_subrev_f32 {p0}, {sM0}, {p0}
v_subrev_f32 {p1}, {sM1}, {p1}
v_exp_f32 {p0}, {p0}
v_exp_f32 {p1}, {p1}
v_mov_b32 {vT[2]}, {sM0}
v_mov_b32 {vT[3]}, {sM1}
v_cvt_pk_bf16_f32 {vT[0]}, {p0}, {p1}
s_lshl_b32 {sT0}, {sW}, 3
s_add_u32 {sT0}, {sT0}, {MB}
ds_write_b16 {vPW}, {vT[0]}
ds_write_b16_d16_hi {vPW}, {vT[0]} offset:128
v_mov_b32 {vT[4]}, {sT0}
s_mov_b64 exec, 1
ds_write_b64 {vT[4]}, {vT[2:4]}
s_mov_b64 exec, -1''')
stamp()
def pv_head():
    e('s_waitcnt lgkmcnt(0)\ns_barrier')
    for u in range(4):
        e(f's_mov_b64 exec, {mT[u]}\nds_read_b128 {vAQ[4*u:4*u+4]}, {vQR} offset:{PB - QB + 256*u}')
    e(f'''s_mov_b64 exec, -1
v_mov_b32 {vT[4]}, {MB}
ds_read_b128 {vMM[0:4]}, {vT[4]}
ds_read_b128 {vMM[4:8]}, {vT[4]} offset:16
ds_read_b64 {vMM[8:10]}, {vMR}''')
def pv_meta():
    for s in wave_reduce('v_add_f32', [p0, p1]): e(s)
    e(f'''v_readlane_b32 {sT0}, {p0}, 63
v_readlane_b32 {sT1}, {p1}, 63
v_writelane_b32 {vT[2]}, {sM1}, 1
v_mov_b32 {vT[3]}, {sT0}
v_writelane_b32 {vT[3]}, {sT1}, 1''')
    mode_store(f'buffer_store_dwordx2 {vT[2:4]}, {vH2ms}, {rWS}, {sLoc} offen')
def pv_mm(u):
    for tau in range(2):
        e(f'v_smfmac_f32_16x16x64_bf16 {vD[4*tau:4*tau+4]}, {vAQ[4*u:4*u+4]}, {aV[16*u+8*tau:16*u+8*tau+8]}, {vIdx}')
def v_tr(u):
    for tau in range(2):
        for p in range(4):
            e(f'ds_read_b64_tr_b16 {aV[16*u+8*tau+2*p:16*u+8*tau+2*p+2]}, {vVR[tau]} offset:{u*16384 + (p>>1)*8192 + (p&1)*512}')
lp2 = lab('p2'); lno = lab('no'); ljoin = lab('pj')
e(f's_cmp_lg_u32 {sPass}, 0\ns_cbranch_scc0 {lno}')
pv_head(); pv_meta()
for u in range(4):
    e(f's_waitcnt lgkmcnt({6-u})'); pv_mm(u)
e(f'{ljoin}:')
nst[0] += 1
sv = (e.out, e.hist); e.out, e.hist = [], []
e(f'{lno}:\ns_cmp_lg_u32 {sRole}, 0\ns_cbranch_scc1 {lno}a')
dma_tail(0, opt['nwo'], 1152)
e(f's_waitcnt vmcnt({opt["nwo"]})\ns_branch {lno}b')
e(f'{lno}a:\ns_waitcnt vmcnt({(opt["pfo"] == 1) + opt["pff"]})\n{lno}b:')
nst[0] -= 1; stamp()
pv_head(); v_tr(0); pv_meta()
for u in range(4):
    e('s_waitcnt lgkmcnt(0)')
    if u < 3: v_tr(u + 1)
    pv_mm(u)
e(f's_branch {ljoin}')
cold.append(e.out); e.out, e.hist = sv
f0, f1 = vT[4], vT[5]
e(f'''s_waitcnt lgkmcnt(0)
v_max3_f32 {f0}, {vMM[0]}, {vMM[2]}, {vMM[4]}
v_max3_f32 {f1}, {vMM[1]}, {vMM[3]}, {vMM[5]}
v_max_f32 {f0}, {f0}, {vMM[6]}
v_max_f32 {f1}, {f1}, {vMM[7]}
v_sub_f32 {f0}, {vMM[8]}, {f0}
v_sub_f32 {f1}, {vMM[9]}, {f1}
v_exp_f32 {f0}, {f0}
v_exp_f32 {f1}, {f1}
v_add_f32 {vT[0]}, {vD[0]}, {vD[1]}
v_add_f32 {vT[1]}, {vD[2]}, {vD[3]}
v_add_f32 {vT[2]}, {vD[4]}, {vD[5]}
v_add_f32 {vT[3]}, {vD[6]}, {vD[7]}
v_mul_f32 {vT[0]}, {f0}, {vT[0]}
v_mul_f32 {vT[1]}, {f1}, {vT[1]}
v_mul_f32 {vT[2]}, {f0}, {vT[2]}
v_mul_f32 {vT[3]}, {f1}, {vT[3]}
v_permlane32_swap_b32 {vT[0]}, {vT[1]}
v_permlane32_swap_b32 {vT[2]}, {vT[3]}
v_add_f32 {vT[0]}, {vT[0]}, {vT[1]}
v_add_f32 {vT[2]}, {vT[2]}, {vT[3]}
v_permlane16_swap_b32 {vT[0]}, {vT[2]}
v_add_f32 {vT[0]}, {vT[0]}, {vT[2]}
v_cvt_pk_bf16_f32 {vT[0]}, {vT[0]}, {vT[0]}''')
mode_store(f'buffer_store_short {vT[0]}, {vH2os}, {rWS}, {sLoc} offen')
stamp()
base_st = nst[0]
zero(vD)
e(f's_cmp_eq_u32 {sRole}, 1\ns_cbranch_scc1 L_f1\ns_cmp_eq_u32 {sRole}, 2\ns_cbranch_scc1 L_f2\ns_cmp_eq_u32 {sRole}, 3\ns_cbranch_scc1 L_idle')

lp2 = lab('p2')
e(f's_cmp_lg_u32 {sPass}, 0\ns_cbranch_scc1 {lp2}')
dma_tail(opt['nwo'], 16, 1152)
tail_to_regs(8)
e(f'{lp2}:')
stamp()
mv, lv = vMM[0], vMM[1]
poll('me', lambda: e(f'buffer_load_dwordx2 {vMM[0:2]}, {vH2ml}, {rWS}, {sLoc} offen sc1'),
     lambda: e(f'v_max_u32 {vT[0]}, {mv}, {lv}\nv_cmp_eq_u32 vcc, -1, {vT[0]}'))
def o_loads():
    for k in range(4): e(f'buffer_load_dwordx4 {vB[4*k:4*k+4]}, {vH2ol}, {rWS}, {sLoc} offen offset:{1024*k} sc1')
def o_first(lchk):
    o_loads()
    mc, ma = vT[4], vT[5]
    e(f'''v_max_f32_dpp {mc}, {mv}, {mv} quad_perm:[1,0,3,2] {DPP}
v_max_f32_dpp {mc}, {mc}, {mc} quad_perm:[2,3,0,1] {DPP}
v_max_f32_dpp {ma}, {mc}, {mc} row_ror:4 {DPP}''')
    for s in wave_reduce('v_max_f32', [ma], start=3): e(s)
    e(f'''v_readlane_b32 {sT0}, {ma}, 63
v_subrev_f32 {mv}, {sT0}, {mv}
v_subrev_f32 {mc}, {sT0}, {mc}
v_exp_f32 {mv}, {mv}
v_exp_f32 {mc}, {mc}
v_mul_f32 {lv}, {mv}, {lv}''')
    for s in wave_reduce('v_add_f32', [lv]): e(s)
    e(f'''v_readlane_b32 {sT0}, {lv}, 63
v_rcp_f32 {lv}, {sT0}
v_mul_f32 {mc}, {mc}, {lv}
v_cvt_pk_bf16_f32 {mc}, {mc}, {mc}''')
    for sg in range(2):
        for r in range(4):
            e(f'v_and_b32_dpp {vAC[4*sg+r]}, {mc}, {vMk1 if r & 1 else vMk0} row_newbcast:{8*sg + 4*(r>>1)} {DPP}')
    e(f's_waitcnt vmcnt(0)\ns_branch {lchk}')
poll('o', o_loads, lambda: sentinel_check([vB[i] for i in range(16)]), first=o_first)
stamp()
e(f'''v_smfmac_f32_16x16x64_bf16 {vD[4:8]}, {vAC[0:4]}, {vB[0:8]}, {vIdx2}
v_smfmac_f32_16x16x64_bf16 {vD[4:8]}, {vAC[4:8]}, {vB[8:16]}, {vIdx2}
v_cvt_pk_bf16_f32 {vT[0]}, {vD[4]}, {vD[5]}
v_cvt_pk_bf16_f32 {vT[1]}, {vD[6]}, {vD[7]}
s_mov_b32 exec_hi, 0
ds_write_b64 {vOW}, {vT[0:2]}
s_mov_b64 exec, {m33}
s_waitcnt lgkmcnt(0)
s_barrier''')
gemv(vOR, 8, aT)
push()
stamp()
e(f's_mov_b32 {sStage}, 0\ns_add_u32 {sT2}, {sG}, {sSel}\ns_add_u32 {sT3}, {sLoc}, {L_H4}')
e('L_red:')
def r_check():
    e(f'v_xor_b32 {vT[0]}, {sH}, {vB[0]}')
    for k, s in ((1, sH1), (2, sH2), (3, sH3)): e(f'v_bitop3_b32 {vT[0]}, {vB[k]}, {s}, {vT[0]} bitop3:0xbe')
    e(f'v_and_b32 {vT[0]}, 0xff, {vT[0]}\nv_cmp_ne_u32 vcc, 0, {vT[0]}')
poll('r', lambda: e(f'buffer_load_dwordx4 {vB[0:4]}, {vRl}, {rWS}, {sT2} offen sc1'), r_check)
for st in (4, 8):
    for k in range(4): e(f'v_add_f32_dpp {vB[k]}, {vB[k]}, {vB[k]} row_ror:{st} {DPP}')
e(f'''v_permlane16_swap_b32 {vB[0]}, {vB[2]}
v_permlane16_swap_b32 {vB[1]}, {vB[3]}
v_add_f32 {vT[0]}, {vB[0]}, {vB[2]}
v_add_f32 {vT[1]}, {vB[1]}, {vB[3]}
v_cvt_pk_bf16_f32 {vT[0]}, {vT[0]}, {vT[1]}
v_and_b32 {vT[1]}, 0xffff0000, {vT[0]}
v_lshlrev_b32 {vT[0]}, 16, {vT[0]}
v_add_f32 {vT[0]}, {vT[0]}, {vXr0}
v_add_f32 {vT[1]}, {vT[1]}, {vXr1}
s_add_u32 {sT0}, {sStage}, {sPass}
s_cmp_eq_u32 {sT0}, 2
v_cvt_pk_bf16_f32 {vT[0]}, {vT[0]}, {vT[1]}
s_cbranch_scc1 L_final''')
mode_store(f'buffer_store_dword {vT[0]}, {vRs}, {rWS}, {sT3} offen')
e(f'''v_and_b32 {vXr1}, 0xffff0000, {vT[0]}
v_lshlrev_b32 {vXr0}, 16, {vT[0]}''')
if opt['stamps']:
    k = nst[0]; nst[0] += 2
    e(f's_memrealtime {sT64}\ns_lshl_b32 {sT0}, {sPass}, 5\ns_add_u32 {sT0}, {sT0}, {sStage}\ns_add_u32 m0, {sT0}, {k}\ns_waitcnt lgkmcnt(0)\nv_writelane_b32 {vSt}, {sT64[0]}, m0')
e(f'''s_cmp_lg_u32 {sStage}, 0
s_cbranch_scc1 L_next
s_mov_b32 {sStage}, 1
s_add_u32 {sT2}, {sT2}, {G_HOP}
s_add_u32 {sT3}, {sLoc}, {L_H7}
s_cmp_eq_u32 {sPass}, 0
s_cbranch_scc1 L_red
s_and_b32 {sT0}, {sTile}, 7
s_cmp_eq_u32 {sT0}, {sA}
s_cbranch_scc1 L_red
s_branch L_exit''')
e('L_final:')
srd(rM, pout[0], pout[1], 1152)
e(f'buffer_store_dword {vT[0]}, {vRs}, {rM}, 0 offen')
e(f'''s_or_b32 {sT0}, {sTile}, {sA}
s_cmp_lg_u32 {sT0}, 0
s_cbranch_scc1 L_fin2
v_mov_b32 {vT[1]}, {sE1}
s_mov_b64 exec, 1
buffer_store_dword {vT[1]}, off, {rWS}, 0 sc1
s_mov_b64 exec, -1
L_fin2:''')
if opt['stamps']:
    e(f's_waitcnt vmcnt(0)\ns_memrealtime {sT64}\ns_waitcnt lgkmcnt(0)\nv_writelane_b32 {vSt}, {sT64[0]}, {32 + k + 1}')
e('s_branch L_exit')

nst[0] = base_st
e('L_f1:')
lp2 = lab('p2')
e(f's_cmp_lg_u32 {sPass}, 0\ns_cbranch_scc1 {lp2}')
ffn_tail(9216, opt['g1'], opt['cap1'])
tail_to_regs(9)
e(f'{lp2}:')
stamp()
e(f's_add_u32 {sT2}, {sLoc}, {L_H4}')
poll('x1', lambda: compact_loads(rWS, sT2), lambda: sentinel_check([vX[i] for i in range(8)]))
stamp()
vec_to_lds()
gemv(vXR, 9, aT, fill=stats_list())
h, tt, nn, dd = vT[0], vT[1], vT[4], vT[5]
e(f'''v_add_f32 {h}, {vD[0]}, {vD[1]}
v_add_f32 {tt}, {vD[2]}, {vD[3]}
v_fma_f32 {h}, -{vMean}, {tt}, {h}
v_fma_f32 {h}, {vRstd}, {h}, {vBias}
v_mul_f32 {tt}, {fl(-1.4426950408889634)}, {h}
v_min_f32 {tt}, {tt}, -{tt}
v_exp_f32 {tt}, {tt}
v_cmp_lt_f32 vcc, 0, {h}
s_add_u32 {sT2}, {sLoc}, {L_H5}
v_mul_f32 {dd}, {tt}, {tt}
v_cndmask_b32 {nn}, {dd}, 1.0, vcc
v_cndmask_b32 {dd}, 1.0, {dd}, vcc
v_fma_f32 {nn}, 2.0, {tt}, {nn}
v_fma_f32 {dd}, 2.0, {dd}, {nn}
v_rcp_f32 {dd}, {dd}
v_mul_f32 {h}, {h}, {nn}
v_mul_f32 {h}, {h}, {dd}
v_cvt_pk_bf16_f32 {h}, {h}, {h}''')
mode_store(f'buffer_store_short {h}, {vFs}, {rWS}, {sT2} offen')
stamp()
e('s_branch L_next')

nst[0] = base_st
e('L_f2:')
lp2 = lab('p2')
e(f's_cmp_lg_u32 {sPass}, 0\ns_cbranch_scc1 {lp2}')
if opt['pff']: pf_w2()
ffn_tail(1152, opt['g2'], opt['cap2'])
tail_to_regs(9)
e(f'{lp2}:')
stamp()
e(f's_add_u32 {sT2}, {sLoc}, {L_H5}')
poll('ac', lambda: compact_loads(rWS, sT2), lambda: sentinel_check([vX[i] for i in range(8)]))
stamp()
vec_to_lds()
gemv(vXR, 9, aT)
push()
stamp()

e('s_branch L_next')
e('L_idle:')
e(f's_cmp_lg_u32 {sPass}, 0\ns_cbranch_scc1 L_exit')
if opt['pff']: pf_w2()
e('L_next:')
e(f'''s_cmp_lg_u32 {sPass}, 0
s_cbranch_scc1 L_exit
s_mov_b32 {sPass}, 1
s_add_u32 {sLoc}, {sLoc}, {LOC_PASS}
s_add_u32 {sH1s}, {sH1s}, {H1_PASS}
s_add_u32 {sH1l}, {sH1l}, {H1_PASS}
s_add_u32 {sG}, {sG}, {2 * G_HOP}
s_branch L_top''')
for c in cold: e.out += c
e.hist = []
for b in slow: e(b)
e('L_exit:')
if opt['stamps']:
    e(f'''s_lshl2_add_u32 {sT0}, s2, {sW}
s_lshl_b32 {sT0}, {sT0}, 8
s_add_u32 {sT0}, {sT0}, {WS_STAMP}
v_writelane_b32 {vSt}, {sSt0[0]}, 30
v_writelane_b32 {vSt}, {sSpin}, 31
v_writelane_b32 {vSt}, {sMode}, 63
v_lshlrev_b32 {vT[0]}, 2, {vL}
buffer_store_dword {vSt}, {vT[0]}, {rWS}, {sT0} offen''')
e('L_end:\ns_endpgm')
acc = (V.next + 3) // 4 * 4
e.raw(f'''.section .rodata,"a"
.p2align 6
.amdhsa_kernel {NAME}_kernel
  .amdhsa_next_free_vgpr {acc + A.next}
  .amdhsa_next_free_sgpr 102
  .amdhsa_accum_offset {acc}
  .amdhsa_group_segment_fixed_size 0
  .amdhsa_kernarg_size 96
  .amdhsa_user_sgpr_count 2
  .amdhsa_user_sgpr_kernarg_segment_ptr 1
  .amdhsa_system_sgpr_workgroup_id_x 1
.end_amdhsa_kernel''')
open(sys.argv[1], 'w').write(e.text())
print('vgpr', V.next, 'agpr', A.next, 'sgpr', S.next, 'pads', e.npad, file=sys.stderr)
```

```python
import sys
from emit import Emit, Alloc, R
NAME = 'interleave_layers__sliding_block_cached__dense_activation_mish__decode'
opt = dict(osplit=0, cal=1, nv0=4, nv1=8, nwo=8, g1=0, g2=0, cap1=63, cap2=63, gate=0, touch=1, k0=4, stamps=0, nt=1, wnt=1, dbg=0, sel=0)
for a in sys.argv[2:]:
    k, v = a.split('='); opt[k] = int(v)
NT = ' nt' if opt['nt'] else ''
WNT = ' nt' if opt['wnt'] else ''

WS_HELLO = 0x1000
WS_H1 = 0x20000; H1_PASS = 0x20000
WS_LOC = 0x80000; LOC_XCD = 0xC000; LOC_PASS = 0x6000
L_H2O = 0; L_H2M = 0x4000; L_H4 = 0x4800; L_H5 = 0x5000; L_H7 = 0x5800; L_CAL = 0x5d00
OS = opt['osplit']
WS_G = 0x200000; G_H6 = (36 if OS else 18) * 16384; G_PASS = G_H6 + 18 * 16384
NWO = 8 if OS else 16
WS_STAMP = 0x600000
WS_SIZE = 0x800000
OOB = 0x40000000
VB = 0; KB = 65536; TB = 65536; WQB = 139264
QB = WQB; PB = WQB + 512; OBUF = WQB + 1536
XB = 157696; XSZ = 1280; MB = XB + 4 * XSZ
CB = MB + 32
LDS_SIZE = 163840
CSC = 0.12751743
import struct
def fl(x): return '0x%08x' % struct.unpack('<I', struct.pack('<f', x))[0]

e = Emit()
S = Alloc('s', 4, 102); V = Alloc('v', 1, 256); A = Alloc('a', 0, 256)
sW = R('s', 3, 1)
sA, sJ, sPass, sMode = [S.get(n) for n in ('a', 'j', 'pass', 'mode')]
rWS, rK, rV, rWQ, rT, rM = [S.get(n, 4, 4) for n in ('rWS', 'rK', 'rV', 'rWQ', 'rT', 'rM')]
rO = rWQ
sP = S.get('ptr', 16, 4); sQ = S.get('ptr2', 8, 4)
mT = [S.get('mT%d' % t, 2) for t in range(4)]; m33 = S.get('m33', 2); sT64 = S.get('t64', 2); sSt = S.get('st', 2); sSt0 = S.get('st0', 2); sStT = S.get('stt')
(sRole, sC, sH, sH1, sH2, sH3, sHello, sSpin, sFF, sRot, sT0, sT1, sT2, sT3, sLoc, sH1s, sH1l, sG, sSel, sTile, sStage, sE1,
 sM0, sM1, sCa, sCb) = [S.get(n) for n in
  'role c H H1 H2 H3 hello spin ff rot t0 t1 t2 t3 loc h1s h1l g sel tile stage e1 m0v m1v ca cb'.split()]
vL, vN, vKG = V.get('l'), V.get('n'), V.get('kg')
vT = V.get('t', 12, 2)
vX = V.get('x', 8, 4)
vAX = V.get('ax', 36, 4)
vAQ = V.get('aq', 32, 4)
vB = V.get('b', 16, 4)
vAC = V.get('ac', 8, 4)
vD = V.get('d', 8, 4)
vMM = V.get('mm', 10, 4)
vKD = V.get('kd', 4); vVD = V.get('vd', 4)
(vWD, vTD, vWTr, vWTr2, vWTrQ, vXW, vXR, vXRQ, vQW, vQR, vPW, vMR, vOW, vOR, vIdx, vIdx2, vMk0, vMk1, vTag,
 vH1s, vH1l, vH2os, vH2ms, vH2ol, vH2ml, vCl, vCl2, vRl, vRs, vFs, vMean, vRstd, vXr0, vXr1, vBias, vE, vSt, vHl) = [V.get(n) for n in
  'wd td wtr wtr2 wtrq xw xr xrq qw qr pw mr ow or idx idx2 mk0 mk1 tag h1s h1l h2os h2ms h2ol h2ml cl cl2 rl rs fs mean rstd xr0 xr1 bias e st hl'.split()]
vDum = V.get('dum', 1); vKR = V.get('kr', 4); vVR = V.get('vr', 2); vGs = V.get('gs', 2); vGo = V.get('go', 2); vRl6 = V.get('rl6'); vOD = V.get('od'); vP = V.get('p', 2, 2)
aK = A.get('k', 64, 4); aV = A.get('v', 64, 4); aWQ = A.get('wq', 24, 4); aT = A.get('t', 72, 4); aO = A.get('o', 32, 4) if OS else aT[0:64]

slow = []
cold = []
uid = [0]
def lab(p):
    uid[0] += 1; return f'L_{p}{uid[0]}'

class VM:
    n = 0
    def inc(self, k=1): self.n += k; return self.n - 1
    def wait(self, idx): e(f's_waitcnt vmcnt({self.n - idx - 1})')
vm = VM()

nst = [0]
def stamp():
    if not opt['stamps']: return
    k = nst[0]; nst[0] += 1
    e(f's_memrealtime {sSt}\ns_lshl_b32 {sStT}, {sPass}, 5\ns_add_u32 m0, {sStT}, {k}\ns_waitcnt lgkmcnt(0)\nv_writelane_b32 {vSt}, {sSt[0]}, m0')

def mode_store(txt):
    ls, lb = lab('ms'), lab('mb')
    e(f's_cmp_eq_u32 {sMode}, 0\ns_cbranch_scc1 {ls}')
    e(txt)
    e(f'{lb}:')
    slow.append(f'{ls}:\n' + '\n'.join(t + ' sc1' for t in txt.split('\n')) + f'\ns_branch {lb}')

def poll(p, loads, check, first=None):
    l0, l1, l2 = lab(p + 'l'), lab(p + 'c'), lab(p + 'd')
    if first is not None:
        first(l1)
    e(f'{l0}:'); loads(); e('s_waitcnt vmcnt(0)')
    e(f'{l1}:'); check()
    e(f's_cbranch_vccz {l2}\ns_sub_u32 {sSpin}, {sSpin}, 1\ns_cbranch_scc0 {l0}\ns_mov_b32 {sSpin}, 0')
    e(f'{l2}:')

def sentinel_check(regs):
    r = list(regs); acc = vT[0]
    e(f'v_max3_u32 {acc}, {r[0]}, {r[1]}, {r[2] if len(r) > 2 else r[1]}'); r = r[3:]
    while r:
        e(f'v_max3_u32 {acc}, {acc}, {r[0]}, {r[1] if len(r) > 1 else r[0]}'); r = r[2:]
    e(f'v_cmp_eq_u32 vcc, -1, {acc}')

DPP = 'row_mask:0xf bank_mask:0xf'
def wave_reduce(op, rs, start=0):
    steps = [f'row_ror:1 {DPP}', f'row_ror:2 {DPP}', f'row_ror:4 {DPP}', f'row_ror:8 {DPP}',
             'row_bcast:15 row_mask:0xa bank_mask:0xf', 'row_bcast:31 row_mask:0xc bank_mask:0xf'][start:]
    out = []
    for st in steps:
        for r in rs: out.append(f'{op}_dpp {r}, {r}, {r} {st}')
    return out

def srd(r, lo, hi, size):
    e(f's_mov_b32 {r[0]}, {lo}\ns_mov_b32 {r[1]}, {hi}\ns_mov_b32 {r[2]}, {size}\ns_mov_b32 {r[3]}, 0x20000')

def compact_loads(r, soff, flag=' sc1'):
    e(f'buffer_load_dwordx4 {vX[0:4]}, {vCl}, {r}, {soff} offen{flag}')
    e(f'buffer_load_dwordx4 {vX[4:8]}, {vCl2}, {r}, {soff} offen{flag}')

def vec_to_lds():
    e(f'ds_write_b128 {vXW}, {vX[0:4]}')
    e(f's_mov_b64 exec, 0xffff\nds_write_b128 {vXW}, {vX[4:8]} offset:1024\ns_mov_b64 exec, {m33}')

def stats_list():
    s, q = vT[2], vT[3]
    o = [f'v_mov_b32 {s}, 0', f'v_mov_b32 {q}, 0']
    for i in range(8):
        o.append(f'v_dot2c_f32_bf16 {s}, 0x3f803f80, {vX[i]}')
        o.append(f'v_dot2c_f32_bf16 {q}, {vX[i]}, {vX[i]}')
    o += wave_reduce('v_add_f32', [s, q])
    o += [f'v_readlane_b32 {sT0}, {s}, 63', f'v_readlane_b32 {sT1}, {q}, 63',
          f'v_mov_b32 {s}, {fl(1/576)}',
          f'v_mul_f32 {vMean}, {sT0}, {s}', f'v_mul_f32 {q}, {sT1}, {s}',
          f'v_fma_f32 {q}, -{vMean}, {vMean}, {q}', f'v_max_f32 {q}, 0, {q}',
          f'v_add_f32 {q}, {fl(1e-5)}, {q}', f'v_rsq_f32 {vRstd}, {q}']
    return o

def interleave(mf, fill, per=2):
    fill = list(fill)
    for m in mf:
        e(m)
        for _ in range(per):
            if fill: e(fill.pop(0))
    for f in fill: e(f)

def cal_sample(c):
    d = sCb if c else sCa
    e(f'''s_memtime {sSt}
s_load_dword {sM0}, {sT64}, {c*8192} glc
s_waitcnt lgkmcnt(0)
s_mov_b32 {sT0}, {sSt[0]}
s_memtime {sSt}
s_waitcnt lgkmcnt(0)
s_sub_u32 {sT0}, {sSt[0]}, {sT0}
s_min_u32 {d}, {d}, {sT0}''')

def zero(r):
    for i in range(r.n): e(f'v_mov_b32 {r[i]}, 0')

def dma_kv(r, voffs, ldsbase, t):
    e(f's_add_u32 m0, {sT2}, {ldsbase + t * 1024}')
    e(f'buffer_load_dwordx4 {voffs[t & 3]}, {r}, {sRot} offen{NT} lds')
    e(f's_add_u32 {sRot}, {sRot}, 1024\ns_and_b32 {sRot}, {sRot}, 16383')
    return vm.inc()

def dma_wo(k0, n):
    if n <= k0: return
    e(f's_mul_i32 {sT0}, {sW}, {8 * 1152}\ns_lshl_b32 {sT1}, {sW}, 10\ns_add_u32 m0, {sT1}, {TB + 4096 * k0}')
    if k0: e(f's_add_u32 {sT0}, {sT0}, {32 * 1152 * k0}')
    for k in range(k0, n):
        e(f'buffer_load_dwordx4 {vOD}, {rO}, {sT0} offen{WNT} lds')
        if k != n - 1: e(f's_add_u32 {sT0}, {sT0}, {32 * 1152}\ns_add_u32 m0, m0, 4096')

def ffn_tail(pitch, g, cap, gate):
    l0, l1, l2 = lab('fg'), lab('fr'), lab('fd')
    one = f'buffer_load_dwordx4 {vTD}, {rT}, {sT0} offen{WNT} lds\ns_add_u32 {sT0}, {sT0}, {32 * pitch}\ns_add_u32 m0, m0, 4096\ns_add_u32 {sT3}, {sT3}, 1'
    e(f's_mul_i32 {sT0}, {sW}, {8 * pitch}\ns_lshl_b32 {sT1}, {sW}, 10\ns_add_u32 m0, {sT1}, {TB}\ns_mov_b32 {sT3}, 0')
    if gate:
        e(f'{l0}:\nbuffer_load_dwordx2 {vMM[0:2]}, {vH2ml}, {rWS}, {sLoc} offen sc1')
        for _ in range(g): e(one)
        e(f'''s_waitcnt vmcnt({g})
v_max_u32 {vT[0]}, {vMM[0]}, {vMM[1]}
v_cmp_eq_u32 vcc, -1, {vT[0]}
s_cbranch_vccz {l1}''')
        if g:
            e(f's_cmp_le_u32 {sT3}, {18 - g}\ns_cbranch_scc1 {l0}')
        else:
            e(f's_sub_u32 {sSpin}, {sSpin}, 1\ns_cbranch_scc0 {l0}\ns_mov_b32 {sSpin}, 0')
    e(f'{l1}:\ns_cmp_ge_u32 {sT3}, 18\ns_cbranch_scc1 {l2}')
    e(one)
    if cap < 63: e(f's_waitcnt vmcnt({cap})')
    e(f's_branch {l1}\n{l2}:')

def tail_to_regs(steps, wait=True, dst=None):
    dst = dst or aT
    if wait: e('s_waitcnt vmcnt(0)\ns_barrier')
    for t in range(steps):
        for p in range(4):
            off = t * 8192 + (p >> 1) * 4096 + (p & 1) * 256
            ad = vWTr if off < 65536 else vWTr2
            e(f'ds_read_b64_tr_b16 {dst[8*t+2*p:8*t+2*p+2]}, {ad} offset:{off & 65535}')
    e('s_waitcnt lgkmcnt(0)')

def gemv(addr, steps, w, fill=()):
    for t in range(steps): e(f'ds_read_b128 {vAX[4*t:4*t+4]}, {addr} offset:{t*128}')
    e('s_mov_b64 exec, -1')
    mf = []
    for t in range(steps):
        mf.append(f's_waitcnt lgkmcnt({steps-1-t})\nv_smfmac_f32_16x16x64_bf16 {vD[0:4]}, {vAX[4*t:4*t+4]}, {w[8*t:8*t+8]}, {vIdx}')
    interleave(mf, fill, per=3)

def push(vo):
    e(f'v_add_f32 {vT[0]}, {vD[0]}, {vD[1]}')
    e(f'v_bfi_b32 {vT[0]}, {sFF}, {vTag}, {vT[0]}')
    e(f's_add_u32 {sT0}, {sG}, 8192')
    for cp in (sG, sT0):
        for h in range(2): e(f'buffer_store_dword {vT[0]}, {vo[h]}, {rWS}, {cp} offen sc1')

hdr = open('cdna_kernels/' + NAME + '.s.ref').read().split('; Override launch')[0]
e.raw(hdr.rstrip())
e.raw(f'; @launch grid=(256,1,1) block=(256,1,1) lds={LDS_SIZE}')
e.raw('.amdgcn_target "amdgcn-amd-amdhsa--gfx950"\n.text')
e.raw(f'.globl {NAME}_kernel\n.p2align 8\n.type {NAME}_kernel,@function\n{NAME}_kernel:')
t0, t1, t2, t3, t4, t5 = [vT[i] for i in range(6)]
if opt['stamps']: e(f's_memrealtime {sSt0}')
e(f'''s_cmp_ge_u32 s2, 256
s_cbranch_scc1 L_end
s_load_dwordx16 {sP}, s[0:1], 0
s_load_dwordx8 {sQ}, s[0:1], 64
s_getpc_b64 {sT64}
L_pc:
v_lshlrev_b32 {t1}, 7, v0
v_min_u32 {t1}, L_end-L_pc, {t1}
global_load_dword {vDum[0]}, {t1}, {sT64}
v_lshrrev_b32 {t0}, 6, v0
v_and_b32 {vL}, 63, v0
v_readfirstlane_b32 {sW}, {t0}
s_and_b32 {sA}, s2, 7
s_lshr_b32 {sJ}, s2, 3
v_and_b32 {vN}, 15, {vL}
v_lshrrev_b32 {vKG}, 4, {vL}
s_mov_b32 {sPass}, 0
s_mov_b32 {sMode}, 0
s_mov_b32 {sSpin}, 400000
s_mov_b32 {sFF}, 0xff''')
vm.inc()
if opt['stamps']:
    e(f'v_mov_b32 {vSt}, 0');
for tau in range(4):
    e(f'v_add_u32 {t0}, {4*tau}, {vKG}\nv_xor_b32 {t0}, {t0}, {vN}\nv_lshlrev_b32 {t0}, 4, {t0}\nv_lshl_add_u32 {vKD[tau]}, {vKG}, 8, {t0}')
e(f'''s_and_b32 {sT0}, {sW}, 1
s_lshl_b32 {sT0}, {sT0}, 2
v_lshrrev_b32 {t1}, 5, {vL}
v_lshl_add_u32 {t1}, {t1}, 1, {sT0}
v_and_b32 {t2}, 7, {vL}
v_xor_b32 {t2}, {t2}, {t1}
v_lshlrev_b32 {t2}, 4, {t2}
v_lshrrev_b32 {t3}, 3, {vL}
v_lshl_add_u32 {vWD}, {t3}, 13, {t2}
v_lshlrev_b32 {vCl}, 4, {vL}
v_add_u32 {vCl2}, 1024, {vCl}
v_mov_b32 {t4}, {OOB}
v_cmp_gt_u32 vcc, 8, {vL}
v_cndmask_b32 {vCl2}, {t4}, {vCl2}, vcc''')
e(f'''s_mul_i32 {sRole}, {sJ}, 57
s_lshr_b32 {sRole}, {sRole}, 9
s_mul_i32 {sT0}, {sRole}, 9
s_sub_u32 {sC}, {sJ}, {sT0}
s_lshl_b32 {sTile}, {sC}, 2
s_add_u32 {sTile}, {sTile}, {sW}
s_and_b32 {sRot}, {sJ}, 3
s_lshl_b32 {sRot}, {sRot}, 12''')
e(f'''s_lshr_b32 {sT0}, {sJ}, 4
s_lshl1_add_u32 {sT0}, {sA}, {sT0}
s_lshl_b32 {sT0}, {sT0}, 23
s_and_b32 {sT1}, {sJ}, 15
s_lshl_b32 {sT1}, {sT1}, 16
s_add_u32 {sT0}, {sT0}, {sT1}
s_lshl_b32 {sT2}, {sW}, 14
s_add_u32 {sT0}, {sT0}, {sT2}
s_add_u32 {sT0}, {sT0}, {28672*256}''')
e(f'''s_and_b32 {sT1}, {sJ}, 3
s_mul_i32 {sT1}, {sT1}, {144*8192}
s_lshr_b32 {sT3}, {sJ}, 2
s_lshl_b32 {sT3}, {sT3}, 7
s_add_u32 {sT1}, {sT1}, {sT3}
s_lshl_b32 {sT3}, {sA}, 10
s_add_u32 {sT1}, {sT1}, {sT3}
s_mul_i32 {sLoc}, {sA}, {LOC_XCD}
s_add_u32 {sLoc}, {sLoc}, {WS_LOC}
s_waitcnt lgkmcnt(0)''')
px, pk, pv, pwq, pwo, pbx, pw1, pb1 = [sP[2*i:2*i+2] for i in range(8)]
pw2, pout, pdbg, pws = [sQ[2*i:2*i+2] for i in range(4)]
e(f's_add_u32 {rK[0]}, {pk[0]}, {sT0}\ns_addc_u32 {rK[1]}, {pk[1]}, 0\ns_mov_b32 {rK[2]}, 16384\ns_mov_b32 {rK[3]}, 0x20000')
iK = []
for t in range(opt['k0']): iK.append(dma_kv(rK, vKD, KB, t))
srd(rWS, pws[0], pws[1], WS_SIZE)
srd(rM, px[0], px[1], 1152)
e(f'buffer_load_dword {vE}, off, {rWS}, 0 sc1'); iE = vm.inc()
compact_loads(rM, 0, ''); iX = vm.inc(2) + 1
e(f's_add_u32 {rWQ[0]}, {pwq[0]}, {sT1}\ns_addc_u32 {rWQ[1]}, {pwq[1]}, 0\ns_mov_b32 {rWQ[2]}, {143*8192+128}\ns_mov_b32 {rWQ[3]}, 0x20000')
e(f's_add_u32 {rV[0]}, {pv[0]}, {sT0}\ns_addc_u32 {rV[1]}, {pv[1]}, 0\ns_mov_b32 {rV[2]}, 16384\ns_mov_b32 {rV[3]}, 0x20000')
e(f's_lshl_b32 {sT0}, {sW}, 16\ns_lshl_b32 {sT1}, {sW}, 10\ns_add_u32 m0, {sT1}, {WQB}')
for k in range(5):
    if k == 4:
        e(f's_and_b32 {sT1}, {sW}, 1\ns_add_u32 {sT1}, {sT1}, 16\ns_lshl_b32 {sT0}, {sT1}, 16\ns_lshl_b32 {sT1}, {sT1}, 10\ns_add_u32 m0, {sT1}, {WQB}')
    e(f'buffer_load_dwordx4 {vWD}, {rWQ}, {sT0} offen{WNT} lds'); iWQ = vm.inc()
    if k < 3: e(f's_add_u32 {sT0}, {sT0}, {32*8192}\ns_add_u32 m0, m0, 4096')
e(f'''s_lshl2_add_u32 {sT0}, {sJ}, {sW}
s_mul_i32 {sT0}, {sT0}, 384
s_add_u32 {sT0}, {sT0}, {sLoc}
v_mov_b32 {vB[0]}, -1
v_mov_b32 {vB[1]}, -1
v_mov_b32 {vB[2]}, -1
v_mov_b32 {vB[3]}, -1
v_cmp_gt_u32 vcc, 24, {vL}
v_cndmask_b32 {t0}, {t4}, {vCl}, vcc
buffer_store_dwordx4 {vB[0:4]}, {t0}, {rWS}, {sT0} offen sc1'''); iClr = vm.inc()
for t in range(opt['k0'], 6): iK.append(dma_kv(rK, vKD, KB, t))
stamp()
e(f'''v_and_b32 {t0}, 3, {vL}
v_lshl_add_u32 {t0}, {t0}, 2, {vKG}
s_lshl_b32 {sT0}, {sTile}, 5
v_lshl_add_u32 {t0}, {t0}, 1, {sT0}
buffer_load_ushort {vXr0}, {t0}, {rM}, 0 offen
v_and_b32 {t1}, 0x1c, {vL}
v_cmp_eq_u32 vcc, 0, {t1}
v_cndmask_b32 {vRs}, {t4}, {t0}, vcc'''); iXr = vm.inc()
e(f'''s_mov_b32 {rM[0]}, {pb1[0]}
s_mov_b32 {rM[1]}, {pb1[1]}
s_mov_b32 {rM[2]}, 9216
v_lshl_add_u32 {t0}, {vN}, 1, {sT0}
s_mul_i32 {sT1}, {sA}, 1152
buffer_load_ushort {vBias}, {t0}, {rM}, {sT1} offen
v_cmp_gt_u32 vcc, 16, {vL}
v_cndmask_b32 {vFs}, {t4}, {t0}, vcc'''); iBias = vm.inc()
e(f'''s_cmp_eq_u32 {sRole}, 1
s_cselect_b32 {rT[0]}, {pw1[0]}, {pw2[0]}
s_cselect_b32 {rT[1]}, {pw1[1]}, {pw2[1]}
s_mov_b32 {sT0}, {576*1152}
s_mov_b32 {sT1}, 1152
s_mov_b32 {rT[2]}, {575*1152+128}
s_cselect_b32 {sT0}, 1152, {sT0}
s_cselect_b32 {sT1}, 9216, {sT1}
s_cselect_b32 {rT[2]}, {575*9216+128}, {rT[2]}
s_mul_i32 {sT0}, {sT0}, {sA}
s_lshl_b32 {sT3}, {sC}, 7
s_add_u32 {sT0}, {sT0}, {sT3}
s_add_u32 {rT[0]}, {rT[0]}, {sT0}
s_addc_u32 {rT[1]}, {rT[1]}, 0
s_mov_b32 {rT[3]}, 0x20000
v_mul_lo_u32 {vTD}, {t3}, {sT1}
v_add_u32 {vTD}, {vTD}, {t2}
v_mul_u32_u24 {vOD}, 1152, {t3}
v_add_u32 {vOD}, {vOD}, {t2}''')
for t in range(4):
    e(f's_mov_b32 {mT[t][0]}, {0x000F000F << (4*t)}\ns_mov_b32 {mT[t][1]}, {0x000F000F << (4*t)}')
e(f's_mov_b32 {m33[0]}, 0x33333333\ns_mov_b32 {m33[1]}, 0x33333333')
for tau in range(4):
    e(f'v_and_b32 {t0}, 1, {vKG}\nv_lshlrev_b32 {t0}, 1, {t0}\nv_or_b32 {t0}, {tau << 2}, {t0}\nv_xor_b32 {t0}, {t0}, {vN}\nv_lshlrev_b32 {t0}, 4, {t0}\nv_lshl_add_u32 {vVD[tau]}, {vKG}, 8, {t0}')
e(f's_add_u32 {sT0}, {sT2}, {KB}')
for q in range(4):
    e(f'v_add_u32 {t0}, {4*q}, {vKG}\nv_xor_b32 {t0}, {t0}, {vN}\nv_lshlrev_b32 {t0}, 4, {t0}\nv_lshl_add_u32 {t0}, {vN}, 8, {t0}\nv_add_u32 {vKR[q]}, {sT0}, {t0}')
e(f'''v_lshrrev_b32 {t0}, 5, {vL}
v_lshlrev_b32 {t0}, 4, {t0}
v_and_b32 {t1}, 1, {vKG}
v_lshl_add_u32 {t0}, {t1}, 2, {t0}
v_bfe_u32 {t2}, {vL}, 2, 1
v_add_u32 {t0}, {t0}, {t2}
v_bfe_u32 {t3}, {vL}, 3, 1
v_lshl_add_u32 {t0}, {t3}, 3, {t0}
v_lshl_add_u32 {t1}, {t3}, 1, {t1}
v_and_b32 {t3}, 3, {vL}
v_lshlrev_b32 {t3}, 3, {t3}
v_xor_b32 {t5}, {sW}, {t1}
v_lshl_add_u32 {t5}, {t5}, 5, {t3}
v_lshl_add_u32 {t5}, {t0}, 7, {t5}
v_add_u32 {vWTr}, {TB}, {t5}
v_add_u32 {vWTr2}, {TB + 65536}, {t5}
v_add_u32 {vWTrQ}, {WQB}, {t5}
v_lshl_add_u32 {t1}, {t1}, 1, {t2}
s_lshl_b32 {sT0}, {sW}, 1
v_xor_b32 {t1}, {sT0}, {t1}
v_lshl_add_u32 {t0}, {t0}, 8, {t3}
v_lshl_add_u32 {vVR[0]}, {t1}, 5, {t0}
v_xor_b32 {t1}, 1, {t1}
v_lshl_add_u32 {vVR[1]}, {t1}, 5, {t0}''')
e(f'''s_mul_i32 {sT0}, {sW}, {XSZ}
s_add_u32 {sT0}, {sT0}, {XB}
v_add_u32 {vXW}, {sT0}, {vCl}
v_and_b32 {t0}, 1, {vL}
v_lshlrev_b32 {t0}, 4, {t0}
v_lshl_add_u32 {t0}, {vKG}, 5, {t0}
v_add_u32 {vXR}, {sT0}, {t0}
s_and_b32 {sT1}, {sJ}, 3
s_mul_i32 {sT1}, {sT1}, 288
v_add_u32 {vXRQ}, {sT1}, {vXR}
v_add_u32 {vOR}, {OBUF}, {t0}
v_bfe_u32 {t1}, {vL}, 1, 1
v_lshl_add_u32 {t0}, {t1}, 7, {t0}
v_add_u32 {vQR}, {QB}, {t0}
v_lshlrev_b32 {t0}, 5, {vKG}
v_lshl_add_u32 {t0}, {t1}, 4, {t0}
v_bfe_u32 {t1}, {vL}, 2, 2
v_lshl_add_u32 {t0}, {t1}, 2, {t0}
v_and_b32 {t1}, 1, {vL}
v_lshl_add_u32 {t0}, {t1}, 1, {t0}
s_and_b32 {sT0}, {sW}, 1
s_lshl_b32 {sT0}, {sT0}, 8
s_lshr_b32 {sT1}, {sW}, 1
s_lshl_b32 {sT1}, {sT1}, 7
s_add_u32 {sT0}, {sT0}, {sT1}
s_add_u32 {sT0}, {sT0}, {QB}
v_add_u32 {vQW}, {sT0}, {t0}
s_lshl_b32 {sT0}, {sW}, 8
s_add_u32 {sT1}, {sT0}, {PB}
v_lshl_add_u32 {vPW}, {vL}, 1, {sT1}
v_lshlrev_b32 {t0}, 3, {vKG}
v_add_u32 {vMR}, {MB}, {t0}
s_and_b32 {sT1}, {sT0}, {256 if OS else 1023}
s_add_u32 {sT1}, {sT1}, {OBUF}
v_and_b32 {t0}, 8, {t0}
v_lshl_add_u32 {t0}, {vN}, 4, {t0}
v_add_u32 {vOW}, {sT1}, {t0}''')
e(f'''v_and_b32 {t0}, 1, {vL}
v_mov_b32 {t1}, 0xaaaa
v_mul_u32_u24 {t1}, {t0}, {t1}
v_add_u32 {vIdx}, 0x4444, {t1}
v_and_b32 {t0}, 3, {vL}
v_xor_b32 {t1}, 1, {t0}
v_lshl_add_u32 {t0}, {t1}, 2, {t0}
v_mul_u32_u24 {vIdx2}, 0x1111, {t0}
v_bfe_u32 {t0}, {vL}, 2, 1
v_mul_u32_u24 {vMk1}, 0xffff, {t0}
v_xor_b32 {vMk0}, 0xffff, {vMk1}''')
e(f'''v_lshlrev_b32 {vH1l}, 3, {vL}
v_cmp_gt_u32 vcc, 16, {vL}
v_cndmask_b32 {vH1s}, {t4}, {vH1l}, vcc
s_lshl_b32 {sT0}, {sA}, 14
s_add_u32 {sT0}, {sT0}, {WS_H1}
s_lshl_b32 {sT1}, {sJ}, 9
s_add_u32 {sH1s}, {sT0}, {sT1}
s_lshl_b32 {sT1}, {sW}, 7
s_add_u32 {sH1s}, {sH1s}, {sT1}
s_lshr_b32 {sT1}, {sJ}, 4
s_lshl2_add_u32 {sT3}, {sT1}, {sW}
s_lshl_b32 {sT3}, {sT3}, 11
s_add_u32 {sH1l}, {sT0}, {sT3}
s_lshl_b32 {sT1}, {sT1}, 1
s_and_b32 {sT0}, {sJ}, 15
v_lshrrev_b32 {t0}, 5, {vL}
v_add_u32 {t0}, {sT1}, {t0}
v_and_b32 {t1}, 31, {vL}
v_lshlrev_b32 {vHl}, 2, {t1}
v_lshlrev_b32 {t1}, 1, {t1}
v_lshl_add_u32 {t1}, {t0}, 12, {t1}
s_lshl_b32 {sT3}, {sT0}, 2
s_add_u32 {sT3}, {sT3}, {sW}
s_lshl_b32 {sE1}, {sT3}, 6
v_add_u32 {vH2os}, {sE1}, {t1}
v_add_u32 {t0}, {sT1}, {vL}
v_lshlrev_b32 {t0}, 9, {t0}
s_lshl_b32 {sE1}, {sT3}, 3
s_add_u32 {sE1}, {sE1}, {L_H2M}
v_add_u32 {t0}, {sE1}, {t0}
v_cmp_gt_u32 vcc, 2, {vL}
v_cndmask_b32 {vH2ms}, {t4}, {t0}, vcc
s_and_b32 {sT0}, {sW}, 1
s_and_b32 {sT3}, {sRole}, 2
s_add_u32 {sT3}, {sT3}, {sT0}
s_cmp_eq_u32 {sRole}, {1 if OS else sRole}
s_cselect_b32 {sT3}, {sW}, {sT3}
s_lshl_b32 {sT0}, {sT3}, 12
v_add_u32 {vH2ol}, {sT0}, {vCl}
v_lshrrev_b32 {t0}, 3, {vN}
v_lshlrev_b32 {t0}, 3, {t0}
v_lshl_add_u32 {t0}, {vKG}, 1, {t0}
v_bfe_u32 {t1}, {vL}, 2, 1
v_add_u32 {t0}, {t0}, {t1}
v_and_b32 {t1}, 3, {vL}
v_lshlrev_b32 {t1}, 3, {t1}
v_lshl_add_u32 {t0}, {t0}, 5, {t1}
s_lshl_b32 {sT0}, {sT3}, 9
s_add_u32 {sT0}, {sT0}, {L_H2M}
v_add_u32 {vH2ml}, {sT0}, {t0}''')
def chunked(dst, lin):
    e(f'v_lshrrev_b32 {t5}, 13, {lin}\nv_lshlrev_b32 {t5}, 13, {t5}\nv_add_u32 {dst}, {t5}, {lin}')
for h in range(2):
    e(f'''v_add_u32 {t0}, {4*h}, {vKG}
v_mul_u32_u24 {t0}, 36, {t0}
v_add_u32 {t0}, {sTile}, {t0}
s_lshl_b32 {sT0}, {sA}, 6
v_lshl_add_u32 {t1}, {vN}, 2, {sT0}
v_lshl_add_u32 {t1}, {t0}, 9, {t1}''')
    chunked(vGs[h], t1)
    if not OS:
        e(f'v_mov_b32 {vGo[h]}, {vGs[h]}\nv_add_u32 {vGs[h]}, {G_H6}, {vGs[h]}')
        continue
    e(f'''v_add_u32 {vGs[h]}, {G_H6}, {vGs[h]}
s_lshr_b32 {sT0}, {sRole}, 1
s_lshl1_add_u32 {sT0}, {sA}, {sT0}
s_lshl_b32 {sT0}, {sT0}, 6
v_lshl_add_u32 {t1}, {vN}, 2, {sT0}
v_lshl_add_u32 {t1}, {t0}, 10, {t1}''')
    chunked(vGo[h], t1)
e(f'''s_mul_i32 {sT0}, {sA}, 36
s_add_u32 {sT0}, {sT0}, {sTile}
s_lshl_b32 {sT0}, {sT0}, 9
v_and_b32 {t0}, 31, {vL}
v_lshl_add_u32 {t0}, {t0}, 4, {sT0}''')
chunked(vRl6, t0)
if OS:
    e(f'''v_add_u32 {vRl6}, {G_H6}, {vRl6}
s_lshl_b32 {sT0}, {sT0}, 1
v_add_u32 {t0}, {sT0}, {vCl}''')
    chunked(vRl, t0)
else:
    e(f'v_mov_b32 {vRl}, {vRl6}\nv_add_u32 {vRl6}, {G_H6}, {vRl6}')
e(f'''s_add_u32 {sG}, {pws[0]}, 0x1fffff
s_and_b32 {sG}, {sG}, 0xffe00000
s_sub_u32 {sG}, {sG}, {pws[0]}
s_add_u32 {sG}, {sG}, {WS_G}
s_mov_b32 {sSel}, {opt['sel'] * 8192}''')
if opt['cal']:
    e(f'''v_readfirstlane_b32 {sT0}, {vRl}
s_add_u32 {sT0}, {sT0}, {sG}
s_add_u32 {sT64[0]}, {pws[0]}, {sT0}
s_addc_u32 {sT64[1]}, {pws[1]}, 0
s_load_dword {sM0}, {sT64}, 0 glc
s_load_dword {sM1}, {sT64}, 8192 glc
s_mov_b32 {sCa}, -1
s_mov_b32 {sCb}, -1''')
for i in range(36): e(f'v_mov_b32 {vAX[i]}, 0x3f803f80')
zero(vAQ); zero(vD[0:4])
vm.wait(iE)
e(f'''v_readfirstlane_b32 {sE1}, {vE}
s_getreg_b32 {sT0}, hwreg(HW_REG_XCC_ID, 0, 4)
s_add_u32 {sE1}, {sE1}, 1
s_mul_i32 {sH}, {sE1}, 0x01010101
s_lshr_b32 {sH1}, {sH}, 8
s_lshr_b32 {sH2}, {sH}, 16
s_lshr_b32 {sH3}, {sH}, 24
s_andn2_b32 {sHello}, {sH}, 15
s_or_b32 {sHello}, {sHello}, {sT0}
v_and_b32 {t0}, 3, {vL}
v_lshlrev_b32 {t0}, 3, {t0}
v_bfe_u32 {vTag}, {sH}, {t0}, 8''')
for t in range(6, 9): iK.append(dma_kv(rK, vKD, KB, t))
vm.wait(iClr)
e('s_waitcnt lgkmcnt(0)')
for t in range(9, 12): iK.append(dma_kv(rK, vKD, KB, t))
e('s_barrier')
stamp()
e(f'''s_lshl_b32 {sT0}, {sA}, 7
s_lshl2_add_u32 {sT0}, {sJ}, {sT0}
s_add_u32 {sT0}, {sT0}, {WS_HELLO}
v_mov_b32 {t0}, {sHello}
v_cmp_eq_u32 vcc, 0, v0
v_cndmask_b32 {t1}, {t4}, v0, vcc
buffer_store_dword {t0}, {t1}, {rWS}, {sT0} offen sc1'''); vm.inc()
for t in range(3):
    for p in range(4 if t < 2 else 2):
        e(f'ds_read_b64_tr_b16 {aWQ[8*t+2*p:8*t+2*p+2]}, {vWTrQ} offset:{t*8192 + (p>>1)*4096 + (p&1)*256}')
for i in range(4): e(f'v_accvgpr_write_b32 {aWQ[20+i]}, 0')
e('s_waitcnt lgkmcnt(0)')
e('s_mov_b32 exec_lo, 0')
for i in range(4): e(f'v_accvgpr_write_b32 {aWQ[16+i]}, 0')
e('s_mov_b32 exec_lo, -1\ns_barrier\ns_branch L_q')

e('L_top:')
zero(vD[0:4])
e(f's_add_u32 {sT2}, {sLoc}, {L_H7 - LOC_PASS}')
poll('x', lambda: compact_loads(rWS, sT2), lambda: sentinel_check([vX[i] for i in range(8)]))
e('L_q:')
stamp()
vec_to_lds()
gemv(vXRQ, 3, aWQ)
e(f'''v_add_f32 {vT[0]}, {vD[0]}, {vD[1]}
v_add_f32 {vT[1]}, {vD[2]}, {vD[3]}
v_bfi_b32 {vT[0]}, {sFF}, {vTag}, {vT[0]}
v_bfi_b32 {vT[1]}, {sFF}, {vTag}, {vT[1]}''')
mode_store(f'buffer_store_dwordx2 {vT[0:2]}, {vH1s}, {rWS}, {sH1s} offen'); vm.inc()
stamp()
for s in stats_list(): e(s)
zero(vD)
def h1_loads():
    for k in range(4): e(f'buffer_load_dwordx2 {vB[2*k:2*k+2]}, {vH1l}, {rWS}, {sH1l} offen offset:{512*k} sc1')
def h1_check():
    e(f'v_xor_b32 {vT[0]}, {vB[0]}, {vTag}')
    for k in range(1, 8): e(f'v_bitop3_b32 {vT[0]}, {vB[k]}, {vTag}, {vT[0]} bitop3:0xbe')
    e(f'v_and_b32 {vT[0]}, 0xff, {vT[0]}\nv_cmp_ne_u32 vcc, 0, {vT[0]}')
def kreads(t):
    for q in range(4): e(f'ds_read_b128 {aK[16*t+4*q:16*t+4*q+4]}, {vKR[q]} offset:{t*4096}')
def hello_load(): e(f'buffer_load_dword {vE}, {vHl}, {rWS}, {sT1} offen sc1')
def h1_first(lchk):
    lc = lab('c1')
    e(f's_cmp_eq_u32 {sPass}, 0\ns_cbranch_scc1 {lc}')
    sv = (e.out, e.hist); e.out, e.hist = [], []
    e(f'{lc}:\ns_lshl_b32 {sT2}, {sW}, 14')
    for t in range(12, 16): iK.append(dma_kv(rK, vKD, KB, t))
    vm.wait(iK[7]); kreads(0); kreads(1)
    e(f'v_lshlrev_b32 {vBias}, 16, {vBias}\nv_lshlrev_b32 {vXr0}, 16, {vXr0}')
    nv0, nv1 = opt['nv0'], opt['nv1']
    for t in range(0, nv0 // 2): dma_kv(rV, vVD, VB, t)
    vm.wait(iK[11]); kreads(2)
    for t in range(nv0 // 2, nv0): dma_kv(rV, vVD, VB, t)
    vm.wait(iK[15]); kreads(3)
    stamp()
    e(f's_lshl_b32 {sT1}, {sA}, 7\ns_add_u32 {sT1}, {sT1}, {WS_HELLO}')
    hello_load(); h1_loads()
    nt = 0
    if opt['touch']:
        e(f'''s_lshl2_add_u32 {sT0}, {sJ}, {sW}
s_mul_i32 {sT0}, {sT0}, 384
s_add_u32 {sT0}, {sT0}, {sLoc}
v_lshl_add_u32 {vT[0]}, {vL}, 7, {sT0}
s_add_u32 {sT0}, {sH1s}, {H1_PASS}
v_writelane_b32 {vT[0]}, {sT0}, 3
s_mov_b64 exec, 15
buffer_load_dword {vDum[0]}, {vT[0]}, {rWS}, 0 offen sc1
s_mov_b64 exec, -1''')
        nt = 1
    for t in range(nv0, nv0 + nv1): dma_kv(rV, vVD, VB, t)
    e(f's_waitcnt vmcnt({nv1 + nt})')
    for t in range(nv0 + nv1, 16): dma_kv(rV, vVD, VB, t)
    e(f'''s_and_b32 {sT0}, {sRole}, {2 if OS else 0}
s_lshl2_add_u32 {sT0}, {sA}, {sT0}
s_mul_i32 {sT0}, {sT0}, {128 * 1152}
s_lshl_b32 {sT3}, {sC}, 7
s_add_u32 {sT0}, {sT0}, {sT3}
s_add_u32 {rO[0]}, {pwo[0]}, {sT0}
s_addc_u32 {rO[1]}, {pwo[1]}, 0
s_mov_b32 {rO[2]}, {(NWO*32-1)*1152+128}''')
    def hello_check():
        e(f'v_xor_b32 {vT[0]}, {sH}, {vE}\nv_cmp_lt_u32 vcc, 15, {vT[0]}')
    poll('he', hello_load, hello_check, first=lambda l: e(f's_branch {l}'))
    e(f'v_cmp_ne_u32 vcc, {sHello}, {vE}\ns_cmp_eq_u64 vcc, 0\ns_cselect_b32 {sMode}, 1, 0')
    e(f's_branch {lchk}')
    cold.append(e.out); e.out, e.hist = sv
poll('h1', h1_loads, h1_check, first=h1_first)
stamp()
e(f'''v_add_f32 {vT[0]}, {vB[0]}, {vB[2]}
v_add_f32 {vT[1]}, {vB[1]}, {vB[3]}
v_add_f32 {vT[2]}, {vB[4]}, {vB[6]}
v_add_f32 {vT[3]}, {vB[5]}, {vB[7]}
v_add_f32 {vT[0]}, {vT[0]}, {vT[2]}
v_add_f32 {vT[1]}, {vT[1]}, {vT[3]}
v_fma_f32 {vT[0]}, -{vMean}, {vT[1]}, {vT[0]}
v_mul_f32 {vT[0]}, {vRstd}, {vT[0]}
v_cvt_pk_bf16_f32 {vT[0]}, {vT[0]}, {vT[0]}
ds_write_b16 {vQW}, {vT[0]}
s_waitcnt lgkmcnt(0)
s_barrier''')
for t in range(4):
    e(f's_mov_b64 exec, {mT[t]}')
    for s in range(2): e(f'ds_read_b128 {vAQ[16*s+4*t:16*s+4*t+4]}, {vQR} offset:{256*s}')
e('s_mov_b64 exec, -1')
for t in range(4):
    for s in range(2):
        e(f's_waitcnt lgkmcnt({7-2*t-s})\nv_smfmac_f32_16x16x64_bf16 {vD[0:4]}, {vAQ[16*s+4*t:16*s+4*t+4]}, {aK[16*t+8*s:16*t+8*s+8]}, {vIdx}')
p0, p1 = vP[0], vP[1]
e(f'''v_add_f32 {p0}, {vD[0]}, {vD[1]}
v_add_f32 {p1}, {vD[2]}, {vD[3]}
v_mul_f32 {p0}, {fl(CSC)}, {p0}
v_mul_f32 {p1}, {fl(CSC)}, {p1}
v_max_f32_dpp {vT[0]}, {p0}, {p0} row_ror:1 {DPP}
v_max_f32_dpp {vT[1]}, {p1}, {p1} row_ror:1 {DPP}''')
fill = [f'v_mov_b32 {vD[i]}, 0' for i in range(4)]
red = wave_reduce('v_max_f32', [vT[0], vT[1]], start=1)
for i in range(0, len(red), 2):
    if fill: e(fill.pop(0))
    e(red[i]); e(red[i+1])
e(f'''v_readlane_b32 {sM0}, {vT[0]}, 63
v_readlane_b32 {sM1}, {vT[1]}, 63
v_subrev_f32 {p0}, {sM0}, {p0}
v_subrev_f32 {p1}, {sM1}, {p1}
v_exp_f32 {p0}, {p0}
v_exp_f32 {p1}, {p1}
v_mov_b32 {vT[2]}, {sM0}
v_mov_b32 {vT[3]}, {sM1}
v_cvt_pk_bf16_f32 {vT[0]}, {p0}, {p1}
s_lshl_b32 {sT0}, {sW}, 3
s_add_u32 {sT0}, {sT0}, {MB}
ds_write_b16 {vPW}, {vT[0]}
ds_write_b16_d16_hi {vPW}, {vT[0]} offset:128
v_mov_b32 {vT[4]}, {sT0}
s_mov_b64 exec, 1
ds_write_b64 {vT[4]}, {vT[2:4]}
s_mov_b64 exec, -1''')
stamp()
def pv_head():
    e('s_waitcnt lgkmcnt(0)\ns_barrier')
    for u in range(4):
        e(f's_mov_b64 exec, {mT[u]}\nds_read_b128 {vAQ[4*u:4*u+4]}, {vQR} offset:{PB - QB + 256*u}')
    e(f'''s_mov_b64 exec, -1
v_mov_b32 {vT[4]}, {MB}
ds_read_b128 {vMM[0:4]}, {vT[4]}
ds_read_b128 {vMM[4:8]}, {vT[4]} offset:16
ds_read_b64 {vMM[8:10]}, {vMR}''')
def pv_meta():
    for s in wave_reduce('v_add_f32', [p0, p1]): e(s)
    e(f'''v_readlane_b32 {sT0}, {p0}, 63
v_readlane_b32 {sT1}, {p1}, 63
v_writelane_b32 {vT[2]}, {sM1}, 1
v_mov_b32 {vT[3]}, {sT0}
v_writelane_b32 {vT[3]}, {sT1}, 1''')
    mode_store(f'buffer_store_dwordx2 {vT[2:4]}, {vH2ms}, {rWS}, {sLoc} offen')
def pv_mm(u):
    for tau in range(2):
        e(f'v_smfmac_f32_16x16x64_bf16 {vD[4*tau:4*tau+4]}, {vAQ[4*u:4*u+4]}, {aV[16*u+8*tau:16*u+8*tau+8]}, {vIdx}')
def v_tr(u):
    for tau in range(2):
        for p in range(4):
            e(f'ds_read_b64_tr_b16 {aV[16*u+8*tau+2*p:16*u+8*tau+2*p+2]}, {vVR[tau]} offset:{u*16384 + (p>>1)*8192 + (p&1)*512}')
lp2 = lab('p2'); lno = lab('no'); ljoin = lab('pj')
e(f's_cmp_lg_u32 {sPass}, 0\ns_cbranch_scc0 {lno}')
pv_head(); pv_meta()
for u in range(4):
    e(f's_waitcnt lgkmcnt({6-u})'); pv_mm(u)
e(f'{ljoin}:')
nst[0] += 1
sv = (e.out, e.hist); e.out, e.hist = [], []
e(f'{lno}:\n' + (f's_bitcmp1_b32 {sRole}, 0' if OS else f's_cmp_lg_u32 {sRole}, 0') + f'\ns_cbranch_scc1 {lno}a')
dma_wo(0, opt['nwo'])
e(f's_waitcnt vmcnt({opt["nwo"]})\ns_branch {lno}b')
e(f'{lno}a:\ns_waitcnt vmcnt(0)\n{lno}b:')
nst[0] -= 1; stamp()
pv_head(); v_tr(0); pv_meta()
for u in range(4):
    e('s_waitcnt lgkmcnt(0)')
    if u < 3: v_tr(u + 1)
    pv_mm(u)
e(f's_branch {ljoin}')
cold.append(e.out); e.out, e.hist = sv
f0, f1 = vT[4], vT[5]
e(f'''s_waitcnt lgkmcnt(0)
v_max3_f32 {f0}, {vMM[0]}, {vMM[2]}, {vMM[4]}
v_max3_f32 {f1}, {vMM[1]}, {vMM[3]}, {vMM[5]}
v_max_f32 {f0}, {f0}, {vMM[6]}
v_max_f32 {f1}, {f1}, {vMM[7]}
v_sub_f32 {f0}, {vMM[8]}, {f0}
v_sub_f32 {f1}, {vMM[9]}, {f1}
v_exp_f32 {f0}, {f0}
v_exp_f32 {f1}, {f1}
v_add_f32 {vT[0]}, {vD[0]}, {vD[1]}
v_add_f32 {vT[1]}, {vD[2]}, {vD[3]}
v_add_f32 {vT[2]}, {vD[4]}, {vD[5]}
v_add_f32 {vT[3]}, {vD[6]}, {vD[7]}
v_mul_f32 {vT[0]}, {f0}, {vT[0]}
v_mul_f32 {vT[1]}, {f1}, {vT[1]}
v_mul_f32 {vT[2]}, {f0}, {vT[2]}
v_mul_f32 {vT[3]}, {f1}, {vT[3]}
v_permlane32_swap_b32 {vT[0]}, {vT[1]}
v_permlane32_swap_b32 {vT[2]}, {vT[3]}
v_add_f32 {vT[0]}, {vT[0]}, {vT[1]}
v_add_f32 {vT[2]}, {vT[2]}, {vT[3]}
v_permlane16_swap_b32 {vT[0]}, {vT[2]}
v_add_f32 {vT[0]}, {vT[0]}, {vT[2]}
v_cvt_pk_bf16_f32 {vT[0]}, {vT[0]}, {vT[0]}''')
mode_store(f'buffer_store_short {vT[0]}, {vH2os}, {rWS}, {sLoc} offen')
stamp()
base_st = nst[0]
zero(vD)
if not OS: e(f's_cmp_eq_u32 {sRole}, 2\ns_cbranch_scc1 L_f2')
e(f's_cmp_eq_u32 {sRole}, 1\ns_cbranch_scc1 L_f1\ns_cmp_eq_u32 {sRole}, 3\ns_cbranch_scc1 L_idle')

lp2 = lab('p2')
e(f's_cmp_lg_u32 {sPass}, 0\ns_cbranch_scc1 {lp2}')
dma_wo(opt['nwo'], NWO)
tail_to_regs(NWO // 2, dst=aO)
e(f'{lp2}:')
stamp()
if OS: e(f's_bitcmp1_b32 {sW}, 1\ns_cbranch_scc1 L_obar')
mv, lv = vMM[0], vMM[1]
poll('me', lambda: e(f'buffer_load_dwordx2 {vMM[0:2]}, {vH2ml}, {rWS}, {sLoc} offen sc1'),
     lambda: e(f'v_max_u32 {vT[0]}, {mv}, {lv}\nv_cmp_eq_u32 vcc, -1, {vT[0]}'))
def o_loads():
    for k in range(4): e(f'buffer_load_dwordx4 {vB[4*k:4*k+4]}, {vH2ol}, {rWS}, {sLoc} offen offset:{1024*k} sc1')
def o_first(lchk):
    o_loads()
    mc, ma = vT[4], vT[5]
    e(f'''v_max_f32_dpp {mc}, {mv}, {mv} quad_perm:[1,0,3,2] {DPP}
v_max_f32_dpp {mc}, {mc}, {mc} quad_perm:[2,3,0,1] {DPP}
v_max_f32_dpp {ma}, {mc}, {mc} row_ror:4 {DPP}''')
    for s in wave_reduce('v_max_f32', [ma], start=3): e(s)
    e(f'''v_readlane_b32 {sT0}, {ma}, 63
v_subrev_f32 {mv}, {sT0}, {mv}
v_subrev_f32 {mc}, {sT0}, {mc}
v_exp_f32 {mv}, {mv}
v_exp_f32 {mc}, {mc}
v_mul_f32 {lv}, {mv}, {lv}''')
    for s in wave_reduce('v_add_f32', [lv]): e(s)
    e(f'''v_readlane_b32 {sT0}, {lv}, 63
v_rcp_f32 {lv}, {sT0}
v_mul_f32 {mc}, {mc}, {lv}
v_cvt_pk_bf16_f32 {mc}, {mc}, {mc}''')
    for sg in range(2):
        for r in range(4):
            e(f'v_and_b32_dpp {vAC[4*sg+r]}, {mc}, {vMk1 if r & 1 else vMk0} row_newbcast:{8*sg + 4*(r>>1)} {DPP}')
    e(f's_waitcnt vmcnt(0)\ns_branch {lchk}')
poll('o', o_loads, lambda: sentinel_check([vB[i] for i in range(16)]), first=o_first)
stamp()
e(f'''v_smfmac_f32_16x16x64_bf16 {vD[4:8]}, {vAC[0:4]}, {vB[0:8]}, {vIdx2}
v_smfmac_f32_16x16x64_bf16 {vD[4:8]}, {vAC[4:8]}, {vB[8:16]}, {vIdx2}
v_cvt_pk_bf16_f32 {vT[0]}, {vD[4]}, {vD[5]}
v_cvt_pk_bf16_f32 {vT[1]}, {vD[6]}, {vD[7]}
s_mov_b32 exec_hi, 0
ds_write_b64 {vOW}, {vT[0:2]}
L_obar:
s_mov_b64 exec, {m33}
s_waitcnt lgkmcnt(0)
s_barrier''')
gemv(vOR, NWO // 2, aO)
push(vGo)
stamp()
if OS: e(f's_cmp_lg_u32 {sRole}, 0\ns_cbranch_scc1 L_f2')
def r_check():
    e(f'v_xor_b32 {vT[0]}, {sH}, {vB[0]}')
    for k, s in ((1, sH1), (2, sH2), (3, sH3)): e(f'v_bitop3_b32 {vT[0]}, {vB[k]}, {s}, {vT[0]} bitop3:0xbe')
    e(f'v_and_b32 {vT[0]}, 0xff, {vT[0]}\nv_cmp_ne_u32 vcc, 0, {vT[0]}')
def pick_twin():
    if not opt['cal']: return
    l = lab('tw')
    e(f'''s_cmp_lg_u32 {sPass}, 0
s_cbranch_scc1 {l}
s_add_u32 {sT0}, {sLoc}, {L_CAL}
buffer_load_dwordx2 {vT[6:8]}, {vH1l}, {rWS}, {sT0} offen sc1
s_waitcnt vmcnt(0)''')
    for x in wave_reduce('v_min_u32', [vT[6], vT[7]]): e(x)
    e(f'''v_readlane_b32 {sT0}, {vT[6]}, 63
v_readlane_b32 {sT1}, {vT[7]}, 63
s_cmp_lt_u32 {sT1}, {sT0}
s_cselect_b32 {sSel}, 8192, 0
{l}:''')
def reduce_stage(addr, wide):
    e(f's_add_u32 {sT2}, {sG}, {sSel}')
    poll('r', lambda: e(f'buffer_load_dwordx4 {vB[0:4]}, {addr}, {rWS}, {sT2} offen sc1'), r_check)
    e(f'v_permlane32_swap_b32 {vB[0]}, {vB[2]}\nv_permlane32_swap_b32 {vB[1]}, {vB[3]}')
    if wide: e(f'v_add_f32 {vB[0]}, {vB[0]}, {vB[2]}\nv_add_f32 {vB[1]}, {vB[1]}, {vB[3]}')
    z, c = vT[0], vT[1]
    e(f'''v_permlane16_swap_b32 {vB[0]}, {vB[1]}
v_add_f32 {z}, {vB[0]}, {vB[1]}
v_add_f32_dpp {z}, {z}, {z} row_ror:4 {DPP}
v_add_f32_dpp {z}, {z}, {z} row_ror:8 {DPP}
v_cvt_pk_bf16_f32 {z}, {z}, {z}
v_lshlrev_b32 {z}, 16, {z}
v_add_f32 {z}, {z}, {vXr0}
v_mov_b32 {c}, {z}
v_cvt_pk_bf16_f32 {vXr0}, {z}, {z}
v_lshlrev_b32 {vXr0}, 16, {vXr0}
v_permlane16_swap_b32 {z}, {c}
v_cvt_pk_bf16_f32 {z}, {z}, {c}''')
pick_twin()
e(f's_add_u32 {sT3}, {sLoc}, {L_H4}')
reduce_stage(vRl, OS)
mode_store(f'buffer_store_dword {vT[0]}, {vRs}, {rWS}, {sT3} offen')
stamp()
pick_twin()
if opt['stamps']: e(f'v_writelane_b32 {vSt}, {sSel}, 29')
lr = lab('r2')
e(f'''s_add_u32 {sT3}, {sLoc}, {L_H7}
s_cmp_eq_u32 {sPass}, 0
s_cbranch_scc1 {lr}
s_and_b32 {sT0}, {sTile}, 7
s_cmp_lg_u32 {sT0}, {sA}
s_cbranch_scc1 L_exit''')
srd(rM, pout[0], pout[1], 1152)
e(f'{lr}:')
reduce_stage(vRl6, False)
e(f's_cmp_lg_u32 {sPass}, 0\ns_cbranch_scc1 L_final')
mode_store(f'buffer_store_dword {vT[0]}, {vRs}, {rWS}, {sT3} offen')
stamp()
e('s_branch L_next')
e('L_final:')
e(f'buffer_store_dword {vT[0]}, {vRs}, {rM}, 0 offen')
e(f'''s_or_b32 {sT0}, {sTile}, {sA}
s_cmp_lg_u32 {sT0}, 0
s_cbranch_scc1 L_fin2
v_mov_b32 {vT[1]}, {sE1}
s_mov_b64 exec, 1
buffer_store_dword {vT[1]}, off, {rWS}, 0 sc1
s_mov_b64 exec, -1
L_fin2:''')
if opt['stamps']:
    e(f's_waitcnt vmcnt(0)\ns_memrealtime {sSt}\ns_waitcnt lgkmcnt(0)\nv_writelane_b32 {vSt}, {sSt[0]}, 45')
e('s_branch L_exit')

nst[0] = base_st
e('L_f1:')
lp2 = lab('p2')
e(f's_cmp_lg_u32 {sPass}, 0\ns_cbranch_scc1 {lp2}')
ffn_tail(9216, opt['g1'], opt['cap1'], opt['gate'])
tail_to_regs(9)
e(f'{lp2}:')
stamp()
e(f's_add_u32 {sT2}, {sLoc}, {L_H4}')
poll('x1', lambda: compact_loads(rWS, sT2), lambda: sentinel_check([vX[i] for i in range(8)]))
stamp()
vec_to_lds()
gemv(vXR, 9, aT, fill=stats_list())
h, tt, nn, dd = vT[0], vT[1], vT[4], vT[5]
e(f'''v_add_f32 {h}, {vD[0]}, {vD[1]}
v_add_f32 {tt}, {vD[2]}, {vD[3]}
v_fma_f32 {h}, -{vMean}, {tt}, {h}
v_fma_f32 {h}, {vRstd}, {h}, {vBias}
v_mul_f32 {tt}, {fl(-1.4426950408889634)}, {h}
v_min_f32 {tt}, {tt}, -{tt}
v_exp_f32 {tt}, {tt}
v_cmp_lt_f32 vcc, 0, {h}
s_add_u32 {sT2}, {sLoc}, {L_H5}
v_mul_f32 {dd}, {tt}, {tt}
v_cndmask_b32 {nn}, {dd}, 1.0, vcc
v_cndmask_b32 {dd}, 1.0, {dd}, vcc
v_fma_f32 {nn}, 2.0, {tt}, {nn}
v_fma_f32 {dd}, 2.0, {dd}, {nn}
v_rcp_f32 {dd}, {dd}
v_mul_f32 {h}, {h}, {nn}
v_mul_f32 {h}, {h}, {dd}
v_cvt_pk_bf16_f32 {h}, {h}, {h}''')
mode_store(f'buffer_store_short {h}, {vFs}, {rWS}, {sT2} offen')
stamp()
e('s_branch L_next')

nst[0] = base_st + 3
e('L_f2:')
if OS: zero(vD[0:4])
lp2 = lab('p2')
e(f's_cmp_lg_u32 {sPass}, 0\ns_cbranch_scc1 {lp2}')
ffn_tail(1152, opt['g2'], opt['cap2'], 0)
tail_to_regs(9)
e(f'{lp2}:')
stamp()
e(f's_add_u32 {sT2}, {sLoc}, {L_H5}')
poll('ac', lambda: compact_loads(rWS, sT2), lambda: sentinel_check([vX[i] for i in range(8)]))
stamp()
vec_to_lds()
gemv(vXR, 9, aT)
push(vGs)
stamp()

e('s_branch L_next')
e('L_idle:')
e(f's_cmp_lg_u32 {sPass}, 0\ns_cbranch_scc1 L_exit')
if opt['cal']:
    e('s_waitcnt lgkmcnt(0)')
    for c in (0, 1, 0, 1): cal_sample(c)
    e(f'''v_mov_b32 {vT[0]}, {sCa}
v_mov_b32 {vT[1]}, {sCb}
s_lshl_b32 {sT0}, {sTile}, 3
s_add_u32 {sT0}, {sT0}, {sLoc}
s_add_u32 {sT0}, {sT0}, {L_CAL}
s_mov_b64 exec, 1
buffer_store_dwordx2 {vT[0:2]}, off, {rWS}, {sT0} sc1
s_mov_b64 exec, -1''')
if opt['touch'] and opt['cal']:
    n3 = 288 if OS else 144; per = 44 if OS else 29
    e(f'''s_mul_i32 {sT0}, {sTile}, {per}
v_add_u32 {vT[0]}, {sT0}, {vL}
v_cmp_le_u32 vcc, {n3 + 144}, {vT[0]}
v_cndmask_b32 {vT[1]}, 0, 1, vcc
v_mul_u32_u24 {vT[2]}, {n3 + 144}, {vT[1]}
v_sub_u32 {vT[0]}, {vT[0]}, {vT[2]}
s_mul_i32 {sT0}, {sA}, {n3}
s_mul_i32 {sT1}, {sA}, 144
s_add_u32 {sT1}, {sT1}, {7 * n3}
v_mov_b32 {vT[2]}, {sT0}
v_mov_b32 {vT[3]}, {sT1}
v_cmp_le_u32 vcc, {n3}, {vT[0]}
v_cndmask_b32 {vT[2]}, {vT[2]}, {vT[3]}, vcc
v_add_lshl_u32 {vT[0]}, {vT[0]}, {vT[2]}, 7
v_lshrrev_b32 {vT[2]}, 13, {vT[0]}
v_lshl_add_u32 {vT[0]}, {vT[2]}, 13, {vT[0]}
v_mul_u32_u24 {vT[1]}, {G_PASS}, {vT[1]}
v_add_u32 {vT[0]}, {vT[0]}, {vT[1]}
s_cmp_lt_u32 {sCb}, {sCa}
s_cselect_b32 {sT0}, 8192, 0
s_add_u32 {sT0}, {sT0}, {sG}
s_bfm_b64 exec, {per}, 0
buffer_load_dword {vDum[0]}, {vT[0]}, {rWS}, {sT0} offen sc1
s_mov_b64 exec, -1''')
e('L_next:')
e(f'''s_cmp_lg_u32 {sPass}, 0
s_cbranch_scc1 L_exit
s_mov_b32 {sPass}, 1
s_add_u32 {sLoc}, {sLoc}, {LOC_PASS}
s_add_u32 {sH1s}, {sH1s}, {H1_PASS}
s_add_u32 {sH1l}, {sH1l}, {H1_PASS}
s_add_u32 {sG}, {sG}, {G_PASS}
s_branch L_top''')
for c in cold: e.out += c
e.hist = []
for b in slow: e(b)
e('L_exit:')
if opt['stamps']:
    e(f'''s_lshl2_add_u32 {sT0}, s2, {sW}
s_lshl_b32 {sT0}, {sT0}, 8
s_add_u32 {sT0}, {sT0}, {WS_STAMP}
v_writelane_b32 {vSt}, {sSt0[0]}, 30
v_writelane_b32 {vSt}, {sSpin}, 31
v_writelane_b32 {vSt}, {sMode}, 63
v_lshlrev_b32 {vT[0]}, 2, {vL}
buffer_store_dword {vSt}, {vT[0]}, {rWS}, {sT0} offen''')
e('L_end:\ns_endpgm')
acc = (V.next + 3) // 4 * 4
e.raw(f'''.section .rodata,"a"
.p2align 6
.amdhsa_kernel {NAME}_kernel
  .amdhsa_next_free_vgpr {acc + A.next}
  .amdhsa_next_free_sgpr 102
  .amdhsa_accum_offset {acc}
  .amdhsa_group_segment_fixed_size 0
  .amdhsa_kernarg_size 96
  .amdhsa_user_sgpr_count 2
  .amdhsa_user_sgpr_kernarg_segment_ptr 1
  .amdhsa_system_sgpr_workgroup_id_x 1
.end_amdhsa_kernel''')
open(sys.argv[1], 'w').write(e.text())
print('vgpr', V.next, 'agpr', A.next, 'sgpr', S.next, 'pads', e.npad, file=sys.stderr)
```

```python
import sys
from emit import Emit, Alloc, R
NAME = 'interleave_layers__sliding_block_cached__dense_activation_mish__decode'
opt = dict(t0f=0, t0m=0x7fff, t0=0, both=0, pfo=0, pf3=0, pf1=0, pfnt=0, t2=1, t1=1, uq=16, ka=8, kb=12, sloc=0, gate2=0, il=1, rot=15, pw=4, p2=1, slp=2, sc0=1, pre=26, osplit=0, cal=1, nv0=4, nv1=8, nwo=8, g1=0, g2=0, cap1=63, cap2=63, gate=0, touch=1, k0=4, stamps=0, nt=1, wnt=1, dbg=0, sel=0)
for a in sys.argv[2:]:
    k, v = a.split('='); opt[k] = int(v)
NT = ' nt' if opt['nt'] else ''
WNT = ' nt' if opt['wnt'] else ''
PFNT = ' nt' if opt['pfnt'] else ''

WS_HELLO = 0x1000
WS_LOC = 0x20000 + opt['sloc'] * 0x20000; LOC_XCD = 0x18000; LOC_PASS = 0xC000
L_H1 = 0x6000; H1_PASS = LOC_PASS
L_H2O = 0; L_H2M = 0x4000; L_H4 = 0x4800; L_H5 = 0x5000; L_H7 = 0x5800; L_CAL = 0x5d00
OS = opt['osplit']
WS_G = 0x200000; G_H6 = (36 if OS else 18) * 16384; G_PASS = G_H6 + 18 * 16384
NWO = 8 if OS else 16
WS_STAMP = 0x600000
WS_SIZE = 0x800000
OOB = 0x40000000
VB = 0; KB = 65536; TB = 65536; WQB = 139264
QB = WQB; PB = WQB + 512; OBUF = WQB + 1536
XB = 157696; XSZ = 1280; MB = XB + 4 * XSZ
CB = MB + 32
LDS_SIZE = 163840
CSC = 0.12751743
import struct
def fl(x): return '0x%08x' % struct.unpack('<I', struct.pack('<f', x))[0]

e = Emit()
S = Alloc('s', 4, 102); V = Alloc('v', 1, 256); A = Alloc('a', 0, 256)
sW = R('s', 3, 1)
sA, sJ, sPass, sMode = [S.get(n) for n in ('a', 'j', 'pass', 'mode')]
rWS, rK, rV, rWQ, rT, rM = [S.get(n, 4, 4) for n in ('rWS', 'rK', 'rV', 'rWQ', 'rT', 'rM')]
rO = rWQ
sP = S.get('ptr', 16, 4); sQ = S.get('ptr2', 8, 4)
mT = [S.get('mT%d' % t, 2) for t in range(4)]; m33 = S.get('m33', 2); sT64 = S.get('t64', 2); sSt = S.get('st', 2); sSt0 = S.get('st0', 2); sStT = S.get('stt')
(sRole, sC, sH, sH1, sH2, sH3, sHello, sSpin, sFF, sRot, sT0, sT1, sT2, sT3, sLoc, sH1s, sH1l, sG, sSel, sTile, sStage, sE1,
 sM0, sM1, sCa, sCb, sClr) = [S.get(n) for n in
  'role c H H1 H2 H3 hello spin ff rot t0 t1 t2 t3 loc h1s h1l g sel tile stage e1 m0v m1v ca cb clr'.split()]
vL, vN, vKG = V.get('l'), V.get('n'), V.get('kg')
vT = V.get('t', 12, 2)
vX = V.get('x', 5, 4)
vAX = V.get('ax', 36, 4)
vAQ = V.get('aq', 32, 4)
vB = V.get('b', 16, 4)
vAC = V.get('ac', 8, 4)
vD = V.get('d', 8, 4)
vMM = V.get('mm', 10, 4)
vKD = V.get('kd', 4); vVD = V.get('vd', 4)
(vWD, vTD, vWTr, vWTr2, vWTrQ, vXW, vXR, vXRQ, vQW, vQR, vPW, vMR, vOW, vOR, vIdx, vIdx2, vMk0, vMk1, vTag,
 vH1s, vH1l, vH2os, vH2ms, vH2ol, vH2ml, vCl, vCl2, vRl, vRs, vFs, vMean, vRstd, vXr0, vXr1, vBias, vE, vSt, vHl) = [V.get(n) for n in
  'wd td wtr wtr2 wtrq xw xr xrq qw qr pw mr ow or idx idx2 mk0 mk1 tag h1s h1l h2os h2ms h2ol h2ml cl cl2 rl rs fs mean rstd xr0 xr1 bias e st hl'.split()]
vB2 = V.get('b2', 16, 4); vOnes = V.get('ones', 4, 4); vX2 = V.get('x2', 5, 4); vM2 = V.get('m2', 2, 2); vDum = V.get('dum', 1); vXW2 = V.get('xw2'); vClr = V.get('clr'); vZero = V.get('zero'); vKR = V.get('kr', 4); vVR = V.get('vr', 2); vGs = V.get('gs', 2); vGo = V.get('go', 2); vRl6 = V.get('rl6'); vOD = V.get('od'); vP = V.get('p', 2, 2)
aK = A.get('k', 64, 4); aV = A.get('v', 64, 4); aWQ = A.get('wq', 24, 4); aT = A.get('t', 72, 4); aO = A.get('o', 32, 4) if OS else aT[0:64]

slow = []
cold = []
uid = [0]
def lab(p):
    uid[0] += 1; return f'L_{p}{uid[0]}'

class VM:
    n = 0
    def inc(self, k=1): self.n += k; return self.n - 1
    def wait(self, idx): e(f's_waitcnt vmcnt({self.n - idx - 1})')
vm = VM()

nst = [0]
def stamp():
    if not opt['stamps']: return
    k = nst[0]; nst[0] += 1
    if opt['stamps'] == 2 and k not in (2, 8): return
    if opt['stamps'] == 4 and k not in (2, 7, 8, 9, 11, 12): return
    e(f's_memrealtime {sSt}\ns_lshl_b32 {sStT}, {sPass}, 5\ns_add_u32 m0, {sStT}, {k}\ns_waitcnt lgkmcnt(0)\nv_writelane_b32 {vSt}, {sSt[0]}, m0')

def xstamp(k):
    if opt['stamps'] == 3: e(f's_memrealtime {sSt}\ns_waitcnt lgkmcnt(0)\nv_writelane_b32 {vSt}, {sSt[0]}, {k}')

def mode_store(txt):
    ls, lb = lab('ms'), lab('mb')
    e(f's_cmp_eq_u32 {sMode}, 0\ns_cbranch_scc1 {ls}')
    e('\n'.join(t + (' sc0' if opt['sc0'] else '') for t in txt.split('\n')))
    e(f'{lb}:')
    slow.append(f'{ls}:\n' + '\n'.join(t + ' sc1' for t in txt.split('\n')) + f'\ns_branch {lb}')

def poll(p, loads, check, first=None):
    l0, l1, l2, l3 = lab(p + 'l'), lab(p + 'c'), lab(p + 'd'), lab(p + 'r')
    if first is not None:
        first(l1)
    e(f'{l0}:'); loads()
    e(f's_sub_u32 {sSpin}, {sSpin}, 1\ns_cbranch_scc1 {l3}\ns_waitcnt vmcnt(0)')
    e(f'{l1}:'); check()
    e(f's_cbranch_vccnz {l0}\n{l2}:')
    slow.append(f'{l3}:\ns_mov_b32 {sSpin}, 0\ns_waitcnt vmcnt(0)\ns_branch {l2}')

def poll2(p, n, loads, check, A, B, use=None, gap=None, enter=None):
    l0, lp, la, ld, lt = lab(p + 's'), lab(p + 'l'), lab(p + 'a'), lab(p + 'd'), lab(p + 't')
    if not opt['p2']:
        def first(l1):
            if enter: enter(l0, la)
            e(f'{l0}:')
            if gap: loads(A); gap(); e(f's_waitcnt vmcnt(0)\ns_branch {l1}')
        poll(p, lambda: loads(A), lambda: check(A), first=first)
        e(f'{la}:')
        if use: use(A)
        return
    if enter: enter(l0, la)
    e(f'{l0}:'); loads(A)
    if gap: gap()
    else: e(f's_sleep {opt["slp"]}')
    e(f'{lp}:'); loads(B)
    e(f's_sub_u32 {sSpin}, {sSpin}, 1\ns_cbranch_scc1 {lt}\ns_waitcnt vmcnt({n})')
    check(A); e(f's_cbranch_vccz {la}')
    loads(A); e(f's_waitcnt vmcnt({n})')
    check(B); e(f's_cbranch_vccnz {lp}')
    if use:
        use(B); e(f's_branch {ld}\n{la}:'); e.hist = []; use(A); e(f'{ld}:')
    else:
        for i in range(A.n): e(f'v_mov_b32 {A[i]}, {B[i]}')
        e(f'{la}:')
    slow.append(f'{lt}:\ns_mov_b32 {sSpin}, 0\ns_waitcnt vmcnt(0)\ns_branch {la}')

def touch2():
    if not opt['t2']: return
    e(f'''s_add_u32 {sT0}, {sClr}, {LOC_PASS}
v_lshlrev_b32 {vT[8]}, 7, {vL}
s_mov_b64 exec, 7
buffer_load_dword {vDum[0]}, {vT[8]}, {rWS}, {sT0} offen sc1
s_mov_b64 exec, -1''')

def prewait(off):
    if not opt['pw']: return
    l0, l1 = lab('pw'), lab('pd')
    e(f'''s_add_u32 {sT0}, {sLoc}, {off}
{l0}:
buffer_load_dword {vT[0]}, off, {rWS}, {sT0} sc1
s_sub_u32 {sSpin}, {sSpin}, 1
s_cbranch_scc1 {l1}
s_waitcnt vmcnt(0)
v_cmp_eq_u32 vcc, -1, {vT[0]}
s_cbranch_vccz {l1}b
s_sleep {opt['pw']}
s_branch {l0}
{l1}:
s_mov_b32 {sSpin}, 0
{l1}b:''')

def sentinel_check(regs):
    r = list(regs); acc = vT[0]
    e(f'v_max3_u32 {acc}, {r[0]}, {r[1]}, {r[2] if len(r) > 2 else r[1]}'); r = r[3:]
    while r:
        e(f'v_max3_u32 {acc}, {acc}, {r[0]}, {r[1] if len(r) > 1 else r[0]}'); r = r[2:]
    e(f'v_cmp_eq_u32 vcc, -1, {acc}')

DPP = 'row_mask:0xf bank_mask:0xf'
def wave_reduce(op, rs, start=0):
    steps = [f'row_ror:1 {DPP}', f'row_ror:2 {DPP}', f'row_ror:4 {DPP}', f'row_ror:8 {DPP}',
             'row_bcast:15 row_mask:0xa bank_mask:0xf', 'row_bcast:31 row_mask:0xc bank_mask:0xf'][start:]
    out = []
    for st in steps:
        for r in rs: out.append(f'{op}_dpp {r}, {r}, {r} {st}')
    return out

def srd(r, lo, hi, size):
    e(f's_mov_b32 {r[0]}, {lo}\ns_mov_b32 {r[1]}, {hi}\ns_mov_b32 {r[2]}, {size}\ns_mov_b32 {r[3]}, 0x20000')

def compact_loads(r, soff, flag=' sc1', X=None):
    X = X or vX
    e(f'buffer_load_dwordx4 {X[0:4]}, {vCl}, {r}, {soff} offen{flag}')
    e(f'buffer_load_dword {X[4]}, {vCl2}, {r}, {soff} offen{flag}')

def poll_vec(p):
    poll2(p, 2, lambda X: compact_loads(rWS, sT2, X=X), lambda X: sentinel_check([X[i] for i in range(5)]), vX, vX2)

def vec_to_lds():
    e(f'ds_write_b128 {vXW}, {vX[0:4]}')
    e(f'ds_write_b32 {vXW2}, {vX[4]}\ns_mov_b64 exec, {m33}')

def stats_list():
    s, q = vT[2], vT[3]
    o = [f'v_mov_b32 {s}, 0', f'v_mov_b32 {q}, 0']
    for i in range(5):
        o.append(f'v_dot2c_f32_bf16 {s}, 0x3f803f80, {vX[i]}')
        o.append(f'v_dot2c_f32_bf16 {q}, {vX[i]}, {vX[i]}')
    o += wave_reduce('v_add_f32', [s, q])
    o += [f'v_readlane_b32 {sT0}, {s}, 63', f'v_readlane_b32 {sT1}, {q}, 63',
          f'v_mov_b32 {s}, {fl(1/576)}',
          f'v_mul_f32 {vMean}, {sT0}, {s}', f'v_mul_f32 {q}, {sT1}, {s}',
          f'v_fma_f32 {q}, -{vMean}, {vMean}, {q}', f'v_max_f32 {q}, 0, {q}',
          f'v_add_f32 {q}, {fl(1e-5)}, {q}', f'v_rsq_f32 {vRstd}, {q}']
    return o

def interleave(mf, fill, per=2):
    fill = list(fill)
    for m in mf:
        e(m)
        for _ in range(per):
            if fill: e(fill.pop(0))
    for f in fill: e(f)

def cal_sample(c):
    d = sCb if c else sCa
    e(f'''s_memtime {sSt}
s_load_dword {sM0}, {sT64}, {c*8192} glc
s_waitcnt lgkmcnt(0)
s_mov_b32 {sT0}, {sSt[0]}
s_memtime {sSt}
s_waitcnt lgkmcnt(0)
s_sub_u32 {sT0}, {sSt[0]}, {sT0}
s_min_u32 {d}, {d}, {sT0}''')

def zero(r):
    for i in range(r.n): e(f'v_mov_b32 {r[i]}, 0')

def dma_kv(r, voffs, ldsbase, t):
    e(f's_add_u32 m0, {sT2}, {ldsbase + t * 1024}')
    e(f'buffer_load_dwordx4 {voffs[t & 3]}, {r}, {sRot} offen{NT} lds')
    e(f's_add_u32 {sRot}, {sRot}, 4096\ns_and_b32 {sRot}, {sRot}, 65535' if opt['il'] else f's_add_u32 {sRot}, {sRot}, 1024\ns_and_b32 {sRot}, {sRot}, 16383')
    return vm.inc()

def dma_wo(k0, n):
    if n <= k0: return
    e(f's_mul_i32 {sT0}, {sW}, {8 * 1152}\ns_lshl_b32 {sT1}, {sW}, 10\ns_add_u32 m0, {sT1}, {TB + 4096 * k0}')
    if k0: e(f's_add_u32 {sT0}, {sT0}, {32 * 1152 * k0}')
    for k in range(k0, n):
        e(f'buffer_load_dwordx4 {vOD}, {rO}, {sT0} offen{WNT} lds')
        if k != n - 1: e(f's_add_u32 {sT0}, {sT0}, {32 * 1152}\ns_add_u32 m0, m0, 4096')

def ffn_tail(pitch, g, cap, gate):
    l0, l1, l2 = lab('fg'), lab('fr'), lab('fd')
    one = f'buffer_load_dwordx4 {vTD}, {rT}, {sT0} offen{WNT} lds\ns_add_u32 {sT0}, {sT0}, {32 * pitch}\ns_add_u32 m0, m0, 4096\ns_add_u32 {sT3}, {sT3}, 1'
    e(f's_mul_i32 {sT0}, {sW}, {8 * pitch}\ns_lshl_b32 {sT1}, {sW}, 10\ns_add_u32 m0, {sT1}, {TB}\ns_mov_b32 {sT3}, 0')
    if gate:
        e(f'{l0}:\nbuffer_load_dwordx2 {vMM[0:2]}, {vH2ml}, {rWS}, {sLoc} offen sc1')
        for _ in range(g): e(one)
        e(f'''s_waitcnt vmcnt({g})
v_max_u32 {vT[0]}, {vMM[0]}, {vMM[1]}
v_cmp_eq_u32 vcc, -1, {vT[0]}
s_cbranch_vccz {l1}''')
        if g:
            e(f's_cmp_le_u32 {sT3}, {18 - g}\ns_cbranch_scc1 {l0}')
        else:
            e(f's_sub_u32 {sSpin}, {sSpin}, 1\ns_cbranch_scc0 {l0}\ns_mov_b32 {sSpin}, 0')
    e(f'{l1}:\ns_cmp_ge_u32 {sT3}, 18\ns_cbranch_scc1 {l2}')
    e(one)
    if cap < 63: e(f's_waitcnt vmcnt({cap})')
    e(f's_branch {l1}\n{l2}:')

def tail_to_regs(steps, wait=True, dst=None):
    dst = dst or aT
    if wait: e('s_waitcnt vmcnt(0)\ns_barrier')
    for t in range(steps):
        for p in range(4):
            off = t * 8192 + (p >> 1) * 4096 + (p & 1) * 256
            ad = vWTr if off < 65536 else vWTr2
            e(f'ds_read_b64_tr_b16 {dst[8*t+2*p:8*t+2*p+2]}, {ad} offset:{off & 65535}')
    e('s_waitcnt lgkmcnt(0)')

def gemv(addr, steps, w, fill=()):
    for t in range(steps): e(f'ds_read_b128 {vAX[4*t:4*t+4]}, {addr} offset:{t*128}')
    e('s_mov_b64 exec, -1')
    fill = list(fill)
    for _ in range(min(opt['pre'], len(fill))): e(fill.pop(0))
    mf = []
    for t in range(steps):
        mf.append(f's_waitcnt lgkmcnt({steps-1-t})\nv_smfmac_f32_16x16x64_bf16 {vD[0:4]}, {vAX[4*t:4*t+4]}, {w[8*t:8*t+8]}, {vIdx}')
    interleave(mf, fill, per=2)

def push(vo):
    e(f'v_add_f32 {vT[0]}, {vD[0]}, {vD[1]}')
    e(f'v_bfi_b32 {vT[0]}, {sFF}, {vTag}, {vT[0]}')
    e(f's_add_u32 {sT0}, {sG}, 8192')
    for cp in (sG, sT0):
        for h in range(2): e(f'buffer_store_dword {vT[0]}, {vo[h]}, {rWS}, {cp} offen sc1')

hdr = open('cdna_kernels/' + NAME + '.s.ref').read().split('; Override launch')[0]
e.raw(hdr.rstrip())
e.raw(f'; @launch grid=(256,1,1) block=(256,1,1) lds={LDS_SIZE}')
e.raw('.amdgcn_target "amdgcn-amd-amdhsa--gfx950"\n.text')
e.raw(f'.globl {NAME}_kernel\n.p2align 8\n.type {NAME}_kernel,@function\n{NAME}_kernel:')
t0, t1, t2, t3, t4, t5 = [vT[i] for i in range(6)]
if opt['stamps']: e(f's_memrealtime {sSt0}')
e(f'''s_cmp_ge_u32 s2, 256
s_cbranch_scc1 L_end
s_load_dwordx16 {sP}, s[0:1], 0
s_load_dwordx8 {sQ}, s[0:1], 64
s_getpc_b64 {sT64}
L_pc:
v_lshlrev_b32 {t1}, 7, v0
v_min_u32 {t1}, L_end-L_pc, {t1}
global_load_dword {vDum[0]}, {t1}, {sT64}
v_lshrrev_b32 {t0}, 6, v0
v_and_b32 {vL}, 63, v0
v_readfirstlane_b32 {sW}, {t0}
s_and_b32 {sA}, s2, 7
s_lshr_b32 {sJ}, s2, 3
v_and_b32 {vN}, 15, {vL}
v_lshrrev_b32 {vKG}, 4, {vL}
s_mov_b32 {sPass}, 0
s_mov_b32 {sMode}, 0
s_mov_b32 {sSpin}, 400000
s_mov_b32 {sFF}, 0xff''')
vm.inc()
if opt['stamps']:
    e(f'v_mov_b32 {vSt}, 0');
for tau in range(4):
    e(f'v_add_u32 {t0}, {4*tau}, {vKG}\nv_xor_b32 {t0}, {t0}, {vN}\nv_lshlrev_b32 {t0}, 4, {t0}\nv_lshl_add_u32 {vKD[tau]}, {vKG}, 8, {t0}')
e(f'''s_and_b32 {sT0}, {sW}, 1
s_lshl_b32 {sT0}, {sT0}, 2
v_lshrrev_b32 {t1}, 5, {vL}
v_lshl_add_u32 {t1}, {t1}, 1, {sT0}
v_and_b32 {t2}, 7, {vL}
v_xor_b32 {t2}, {t2}, {t1}
v_lshlrev_b32 {t2}, 4, {t2}
v_lshrrev_b32 {t3}, 3, {vL}
v_lshl_add_u32 {vWD}, {t3}, 13, {t2}
v_lshlrev_b32 {vCl}, 4, {vL}
v_lshlrev_b32 {vCl2}, 2, {vL}
v_add_u32 {vCl2}, 1024, {vCl2}
v_mov_b32 {t4}, {OOB}
v_cmp_gt_u32 vcc, 32, {vL}
v_cndmask_b32 {vCl2}, {t4}, {vCl2}, vcc''')
e(f'''s_mul_i32 {sRole}, {sJ}, 57
s_lshr_b32 {sRole}, {sRole}, 9
s_mul_i32 {sT0}, {sRole}, 9
s_sub_u32 {sC}, {sJ}, {sT0}
s_lshl_b32 {sTile}, {sC}, 2
s_add_u32 {sTile}, {sTile}, {sW}
s_and_b32 {sRot}, {sJ}, {opt['rot'] if opt['il'] else 3}
s_lshl_b32 {sRot}, {sRot}, 12''')
if opt['il']: e(f's_lshl_b32 {sT0}, {sW}, 10\ns_add_u32 {sRot}, {sRot}, {sT0}')
e(f'''s_lshr_b32 {sT0}, {sJ}, 4
s_lshl1_add_u32 {sT0}, {sA}, {sT0}
s_lshl_b32 {sT0}, {sT0}, 23
s_and_b32 {sT1}, {sJ}, 15
s_lshl_b32 {sT1}, {sT1}, 16
s_add_u32 {sT0}, {sT0}, {sT1}
s_lshl_b32 {sT2}, {sW}, 14
s_add_u32 {sT0}, {sT0}, {28672*256}''')
if not opt['il']: e(f's_add_u32 {sT0}, {sT0}, {sT2}')
e(f'''s_and_b32 {sT1}, {sJ}, 3
s_mul_i32 {sT1}, {sT1}, {144*8192}
s_xor_b32 {sT3}, {sJ}, {opt['uq']}
s_lshr_b32 {sT3}, {sT3}, 2
s_lshl_b32 {sT3}, {sT3}, 7
s_add_u32 {sT1}, {sT1}, {sT3}
s_lshl_b32 {sT3}, {sA}, 10
s_add_u32 {sT1}, {sT1}, {sT3}
s_mul_i32 {sLoc}, {sA}, {LOC_XCD}
s_add_u32 {sLoc}, {sLoc}, {WS_LOC}
s_lshl2_add_u32 {sClr}, {sJ}, {sW}
s_mul_i32 {sClr}, {sClr}, 384
s_add_u32 {sClr}, {sClr}, {sLoc}
v_mov_b32 {vOnes[0]}, -1
v_mov_b32 {vOnes[1]}, -1
v_mov_b32 {vOnes[2]}, -1
v_mov_b32 {vOnes[3]}, -1
v_cmp_gt_u32 vcc, 24, {vL}
v_cndmask_b32 {vClr}, {t4}, {vCl}, vcc
s_waitcnt lgkmcnt(0)''')
xstamp(20)
px, pk, pv, pwq, pwo, pbx, pw1, pb1 = [sP[2*i:2*i+2] for i in range(8)]
pw2, pout, pdbg, pws = [sQ[2*i:2*i+2] for i in range(4)]
srd(rWS, pws[0], pws[1], WS_SIZE)
e(f'buffer_load_dword {vE}, off, {rWS}, 0 sc1'); iE = vm.inc()
if opt['t0']:
    e(f'''s_add_u32 {sG}, {pws[0]}, 0x1fffff
s_and_b32 {sG}, {sG}, 0xffe00000
s_sub_u32 {sG}, {sG}, {pws[0]}
s_add_u32 {sG}, {sG}, {WS_G}
s_lshl2_add_u32 {sT3}, s2, {sW}
s_mul_i32 {sT3}, {sT3}, {9 * 128}
s_add_u32 {sT3}, {sT3}, {sG}
v_lshl_add_u32 {t0}, {vL}, 7, {sT3}
s_sub_u32 {sT3}, {sClr}, {9 * 128}
v_lshl_add_u32 {t1}, {vL}, 7, {sT3}
v_add_u32 {t5}, {LOC_PASS - 384}, {t1}
v_cmp_gt_u32 vcc, 12, {vL}
v_cndmask_b32 {t1}, {t5}, {t1}, vcc
v_cmp_gt_u32 vcc, 9, {vL}
v_cndmask_b32 {t0}, {t1}, {t0}, vcc
s_mov_b64 exec, {opt['t0m']}
buffer_load_dword {vDum[0]}, {t0}, {rWS}, 0 offen{['', ' nt', ' sc1'][opt['t0f']]}
s_mov_b64 exec, -1'''); vm.inc()
e(f'buffer_store_dwordx4 {vOnes}, {vClr}, {rWS}, {sClr} offen'); iClr = vm.inc()
e(f's_add_u32 {rK[0]}, {pk[0]}, {sT0}\ns_addc_u32 {rK[1]}, {pk[1]}, 0\ns_mov_b32 {rK[2]}, {65536 if opt["il"] else 16384}\ns_mov_b32 {rK[3]}, 0x20000')
iK = []
for t in range(4):
    iK.append(dma_kv(rK, vKD, KB, t))
    if t == 0: xstamp(21)
xstamp(22)
e(f's_add_u32 {rWQ[0]}, {pwq[0]}, {sT1}\ns_addc_u32 {rWQ[1]}, {pwq[1]}, 0\ns_mov_b32 {rWQ[2]}, {143*8192+128}\ns_mov_b32 {rWQ[3]}, 0x20000')
e(f's_add_u32 {rV[0]}, {pv[0]}, {sT0}\ns_addc_u32 {rV[1]}, {pv[1]}, 0\ns_mov_b32 {rV[2]}, {65536 if opt["il"] else 16384}\ns_mov_b32 {rV[3]}, 0x20000')
e(f's_lshl_b32 {sT0}, {sW}, 16\ns_lshl_b32 {sT1}, {sW}, 10\ns_add_u32 m0, {sT1}, {WQB}')
for k in range(4):
    e(f'buffer_load_dwordx4 {vWD}, {rWQ}, {sT0} offen{WNT} lds'); vm.inc()
    if k < 3: e(f's_add_u32 {sT0}, {sT0}, {32*8192}\ns_add_u32 m0, m0, 4096')
xstamp(24)
stamp()
def late_small_loads():
    global iXr, iBias, iWQ
    e(f's_and_b32 {sT1}, {sW}, 1\ns_add_u32 {sT1}, {sT1}, 16\ns_lshl_b32 {sT0}, {sT1}, 16\ns_lshl_b32 {sT1}, {sT1}, 10\ns_add_u32 m0, {sT1}, {WQB}')
    e(f'buffer_load_dwordx4 {vWD}, {rWQ}, {sT0} offen{WNT} lds'); vm.inc()
    srd(rM, px[0], px[1], 1152)
    compact_loads(rM, 0, ''); iWQ = vm.inc(2) + 1
    e(f'''v_and_b32 {t0}, 3, {vL}
v_lshl_add_u32 {t0}, {t0}, 2, {vKG}
s_lshl_b32 {sT0}, {sTile}, 5
v_lshl_add_u32 {t0}, {t0}, 1, {sT0}
buffer_load_ushort {vXr0}, {t0}, {rM}, 0 offen
v_and_b32 {t1}, 0x1c, {vL}
v_cmp_eq_u32 vcc, 0, {t1}
v_cndmask_b32 {vRs}, {t4}, {t0}, vcc'''); iXr = vm.inc()
    e(f'''s_mov_b32 {rM[0]}, {pb1[0]}
s_mov_b32 {rM[1]}, {pb1[1]}
s_mov_b32 {rM[2]}, 9216
v_lshl_add_u32 {t0}, {vN}, 1, {sT0}
s_mul_i32 {sT1}, {sA}, 1152
buffer_load_ushort {vBias}, {t0}, {rM}, {sT1} offen
v_cmp_gt_u32 vcc, 16, {vL}
v_cndmask_b32 {vFs}, {t4}, {t0}, vcc'''); iBias = vm.inc()
e(f'''s_cmp_eq_u32 {sRole}, 1
s_cselect_b32 {rT[0]}, {pw1[0]}, {pw2[0]}
s_cselect_b32 {rT[1]}, {pw1[1]}, {pw2[1]}
s_mov_b32 {sT0}, {576*1152}
s_mov_b32 {sT1}, 1152
s_mov_b32 {rT[2]}, {575*1152+128}
s_cselect_b32 {sT0}, 1152, {sT0}
s_cselect_b32 {sT1}, 9216, {sT1}
s_cselect_b32 {rT[2]}, {575*9216+128}, {rT[2]}
s_mul_i32 {sT0}, {sT0}, {sA}
s_lshl_b32 {sT3}, {sC}, 7
s_add_u32 {sT0}, {sT0}, {sT3}
s_add_u32 {rT[0]}, {rT[0]}, {sT0}
s_addc_u32 {rT[1]}, {rT[1]}, 0
s_mov_b32 {rT[3]}, 0x20000
v_mul_lo_u32 {vTD}, {t3}, {sT1}
v_add_u32 {vTD}, {vTD}, {t2}
v_mul_u32_u24 {vOD}, 1152, {t3}
v_add_u32 {vOD}, {vOD}, {t2}''')
for t in range(4):
    e(f's_mov_b32 {mT[t][0]}, {0x000F000F << (4*t)}\ns_mov_b32 {mT[t][1]}, {0x000F000F << (4*t)}')
e(f's_mov_b32 {m33[0]}, 0x33333333\ns_mov_b32 {m33[1]}, 0x33333333')
for tau in range(4):
    e(f'v_and_b32 {t0}, 1, {vKG}\nv_lshlrev_b32 {t0}, 1, {t0}\nv_or_b32 {t0}, {tau << 2}, {t0}\nv_xor_b32 {t0}, {t0}, {vN}\nv_lshlrev_b32 {t0}, 4, {t0}\nv_lshl_add_u32 {vVD[tau]}, {vKG}, 8, {t0}')
e(f's_add_u32 {sT0}, {sT2}, {KB}')
for q in range(4):
    e(f'v_add_u32 {t0}, {4*q}, {vKG}\nv_xor_b32 {t0}, {t0}, {vN}\nv_lshlrev_b32 {t0}, 4, {t0}\nv_lshl_add_u32 {t0}, {vN}, 8, {t0}\nv_add_u32 {vKR[q]}, {sT0}, {t0}')
e(f'''v_lshrrev_b32 {t0}, 5, {vL}
v_lshlrev_b32 {t0}, 4, {t0}
v_and_b32 {t1}, 1, {vKG}
v_lshl_add_u32 {t0}, {t1}, 2, {t0}
v_bfe_u32 {t2}, {vL}, 2, 1
v_add_u32 {t0}, {t0}, {t2}
v_bfe_u32 {t3}, {vL}, 3, 1
v_lshl_add_u32 {t0}, {t3}, 3, {t0}
v_lshl_add_u32 {t1}, {t3}, 1, {t1}
v_and_b32 {t3}, 3, {vL}
v_lshlrev_b32 {t3}, 3, {t3}
v_xor_b32 {t5}, {sW}, {t1}
v_lshl_add_u32 {t5}, {t5}, 5, {t3}
v_lshl_add_u32 {t5}, {t0}, 7, {t5}
v_add_u32 {vWTr}, {TB}, {t5}
v_add_u32 {vWTr2}, {TB + 65536}, {t5}
v_add_u32 {vWTrQ}, {WQB}, {t5}
v_lshl_add_u32 {t1}, {t1}, 1, {t2}
s_lshl_b32 {sT0}, {sW}, 1
v_xor_b32 {t1}, {sT0}, {t1}
v_lshl_add_u32 {t0}, {t0}, 8, {t3}
v_lshl_add_u32 {vVR[0]}, {t1}, 5, {t0}
v_xor_b32 {t1}, 1, {t1}
v_lshl_add_u32 {vVR[1]}, {t1}, 5, {t0}''')
e(f'''s_mul_i32 {sT0}, {sW}, {XSZ}
s_add_u32 {sT0}, {sT0}, {XB}
v_add_u32 {vXW}, {sT0}, {vCl}
s_add_u32 {sT1}, {sT0}, 1024
v_lshl_add_u32 {vXW2}, {vL}, 2, {sT1}
v_and_b32 {t0}, 1, {vL}
v_lshlrev_b32 {t0}, 4, {t0}
v_lshl_add_u32 {t0}, {vKG}, 5, {t0}
v_add_u32 {vXR}, {sT0}, {t0}
s_and_b32 {sT1}, {sJ}, 3
s_mul_i32 {sT1}, {sT1}, 288
v_add_u32 {vXRQ}, {sT1}, {vXR}
v_add_u32 {vOR}, {OBUF}, {t0}
v_bfe_u32 {t1}, {vL}, 1, 1
v_lshl_add_u32 {t0}, {t1}, 7, {t0}
v_add_u32 {vQR}, {QB}, {t0}
v_lshlrev_b32 {t0}, 5, {vKG}
v_lshl_add_u32 {t0}, {t1}, 4, {t0}
v_bfe_u32 {t1}, {vL}, 2, 2
v_lshl_add_u32 {t0}, {t1}, 2, {t0}
v_and_b32 {t1}, 1, {vL}
v_lshl_add_u32 {t0}, {t1}, 1, {t0}
s_and_b32 {sT0}, {sW}, 1
s_lshl_b32 {sT0}, {sT0}, 8
s_lshr_b32 {sT1}, {sW}, 1
s_lshl_b32 {sT1}, {sT1}, 7
s_add_u32 {sT0}, {sT0}, {sT1}
s_add_u32 {sT0}, {sT0}, {QB}
v_add_u32 {vQW}, {sT0}, {t0}
s_lshl_b32 {sT0}, {sW}, 8
s_add_u32 {sT1}, {sT0}, {PB}
v_lshl_add_u32 {vPW}, {vL}, 1, {sT1}
v_lshlrev_b32 {t0}, 3, {vKG}
v_add_u32 {vMR}, {MB}, {t0}
s_and_b32 {sT1}, {sT0}, {256 if OS else 1023}
s_add_u32 {sT1}, {sT1}, {OBUF}
v_and_b32 {t0}, 8, {t0}
v_lshl_add_u32 {t0}, {vN}, 4, {t0}
v_add_u32 {vOW}, {sT1}, {t0}''')
e(f'''v_and_b32 {t0}, 1, {vL}
v_mov_b32 {t1}, 0xaaaa
v_mul_u32_u24 {t1}, {t0}, {t1}
v_add_u32 {vIdx}, 0x4444, {t1}
v_and_b32 {t0}, 3, {vL}
v_xor_b32 {t1}, 1, {t0}
v_lshl_add_u32 {t0}, {t1}, 2, {t0}
v_mul_u32_u24 {vIdx2}, 0x1111, {t0}
v_bfe_u32 {t0}, {vL}, 2, 1
v_mul_u32_u24 {vMk1}, 0xffff, {t0}
v_xor_b32 {vMk0}, 0xffff, {vMk1}''')
e(f'''v_lshlrev_b32 {vH1l}, 3, {vL}
v_cmp_gt_u32 vcc, 16, {vL}
v_cndmask_b32 {vH1s}, {t4}, {vH1l}, vcc
s_add_u32 {sT0}, {sLoc}, {L_H1}
s_xor_b32 {sT1}, {sJ}, {opt['uq']}
s_lshl_b32 {sT1}, {sT1}, 9
s_add_u32 {sH1s}, {sT0}, {sT1}
s_lshl_b32 {sT1}, {sW}, 7
s_add_u32 {sH1s}, {sH1s}, {sT1}
s_lshr_b32 {sT1}, {sJ}, 4
s_lshl2_add_u32 {sT3}, {sT1}, {sW}
s_lshl_b32 {sT3}, {sT3}, 11
s_add_u32 {sH1l}, {sT0}, {sT3}
s_lshl_b32 {sT1}, {sT1}, 1
s_and_b32 {sT0}, {sJ}, 15
v_lshrrev_b32 {t0}, 5, {vL}
v_add_u32 {t0}, {sT1}, {t0}
v_and_b32 {t1}, 31, {vL}
v_lshlrev_b32 {vHl}, 2, {t1}
v_lshlrev_b32 {t1}, 1, {t1}
v_lshl_add_u32 {t1}, {t0}, 12, {t1}
s_lshl_b32 {sT3}, {sT0}, 2
s_add_u32 {sT3}, {sT3}, {sW}
s_lshl_b32 {sE1}, {sT3}, 6
v_add_u32 {vH2os}, {sE1}, {t1}
v_add_u32 {t0}, {sT1}, {vL}
v_lshlrev_b32 {t0}, 9, {t0}
s_lshl_b32 {sE1}, {sT3}, 3
s_add_u32 {sE1}, {sE1}, {L_H2M}
v_add_u32 {t0}, {sE1}, {t0}
v_cmp_gt_u32 vcc, 2, {vL}
v_cndmask_b32 {vH2ms}, {t4}, {t0}, vcc
s_and_b32 {sT0}, {sW}, 1
s_and_b32 {sT3}, {sRole}, 2
s_add_u32 {sT3}, {sT3}, {sT0}
s_cmp_eq_u32 {sRole}, {1 if OS else sRole}
s_cselect_b32 {sT3}, {sW}, {sT3}
s_lshl_b32 {sT0}, {sT3}, 12
v_add_u32 {vH2ol}, {sT0}, {vCl}
v_lshrrev_b32 {t0}, 3, {vN}
v_lshlrev_b32 {t0}, 3, {t0}
v_lshl_add_u32 {t0}, {vKG}, 1, {t0}
v_bfe_u32 {t1}, {vL}, 2, 1
v_add_u32 {t0}, {t0}, {t1}
v_and_b32 {t1}, 3, {vL}
v_lshlrev_b32 {t1}, 3, {t1}
v_lshl_add_u32 {t0}, {t0}, 5, {t1}
s_lshl_b32 {sT0}, {sT3}, 9
s_add_u32 {sT0}, {sT0}, {L_H2M}
v_add_u32 {vH2ml}, {sT0}, {t0}''')
def chunked(dst, lin):
    e(f'v_lshrrev_b32 {t5}, 13, {lin}\nv_lshlrev_b32 {t5}, 13, {t5}\nv_add_u32 {dst}, {t5}, {lin}')
for h in range(2):
    e(f'''v_add_u32 {t0}, {4*h}, {vKG}
v_mul_u32_u24 {t0}, 36, {t0}
v_add_u32 {t0}, {sTile}, {t0}
s_lshl_b32 {sT0}, {sA}, 6
v_lshl_add_u32 {t1}, {vN}, 2, {sT0}
v_lshl_add_u32 {t1}, {t0}, 9, {t1}''')
    chunked(vGs[h], t1)
    if not OS:
        e(f'v_mov_b32 {vGo[h]}, {vGs[h]}\nv_add_u32 {vGs[h]}, {G_H6}, {vGs[h]}')
        continue
    e(f'''v_add_u32 {vGs[h]}, {G_H6}, {vGs[h]}
s_lshr_b32 {sT0}, {sRole}, 1
s_lshl1_add_u32 {sT0}, {sA}, {sT0}
s_lshl_b32 {sT0}, {sT0}, 6
v_lshl_add_u32 {t1}, {vN}, 2, {sT0}
v_lshl_add_u32 {t1}, {t0}, 10, {t1}''')
    chunked(vGo[h], t1)
e(f'''s_mul_i32 {sT0}, {sA}, 36
s_add_u32 {sT0}, {sT0}, {sTile}
s_lshl_b32 {sT0}, {sT0}, 9
v_and_b32 {t0}, 31, {vL}
v_lshl_add_u32 {t0}, {t0}, 4, {sT0}''')
chunked(vRl6, t0)
if OS:
    e(f'''v_add_u32 {vRl6}, {G_H6}, {vRl6}
s_lshl_b32 {sT0}, {sT0}, 1
v_add_u32 {t0}, {sT0}, {vCl}''')
    chunked(vRl, t0)
else:
    e(f'v_mov_b32 {vRl}, {vRl6}\nv_add_u32 {vRl6}, {G_H6}, {vRl6}')
e(f'''s_add_u32 {sG}, {pws[0]}, 0x1fffff
s_and_b32 {sG}, {sG}, 0xffe00000
s_sub_u32 {sG}, {sG}, {pws[0]}
s_add_u32 {sG}, {sG}, {WS_G}
s_mov_b32 {sSel}, {opt['sel'] * 8192}''')
if opt['cal']:
    e(f'''v_readfirstlane_b32 {sT0}, {vRl}
s_add_u32 {sT0}, {sT0}, {sG}
s_add_u32 {sT64[0]}, {pws[0]}, {sT0}
s_addc_u32 {sT64[1]}, {pws[1]}, 0
s_load_dword {sM0}, {sT64}, 0 glc
s_load_dword {sM1}, {sT64}, 8192 glc
s_mov_b32 {sCa}, -1
s_mov_b32 {sCb}, -1''')
for i in range(36): e(f'v_mov_b32 {vAX[i]}, 0x3f803f80')
zero(vAQ); zero(vD[0:4]); zero(vZero)
xstamp(25)
vm.wait(iClr)
xstamp(26)
e(f'''v_readfirstlane_b32 {sE1}, {vE}
s_getreg_b32 {sT0}, hwreg(HW_REG_XCC_ID, 0, 4)
s_add_u32 {sE1}, {sE1}, 1
s_mul_i32 {sH}, {sE1}, 0x01010101
s_lshr_b32 {sH1}, {sH}, 8
s_lshr_b32 {sH2}, {sH}, 16
s_lshr_b32 {sH3}, {sH}, 24
s_andn2_b32 {sHello}, {sH}, 15
s_or_b32 {sHello}, {sHello}, {sT0}
v_and_b32 {t0}, 3, {vL}
v_lshlrev_b32 {t0}, 3, {t0}
v_bfe_u32 {vTag}, {sH}, {t0}, 8''')
def hello_store(off):
    e(f'''s_lshl_b32 {sT0}, {sA}, 7
s_lshl2_add_u32 {sT0}, {sJ}, {sT0}
s_add_u32 {sT0}, {sT0}, {off}
v_mov_b32 {vT[6]}, {sHello}
v_mov_b32 {vT[7]}, {OOB}
v_cmp_eq_u32 vcc, 0, v0
v_cndmask_b32 {vT[7]}, {vT[7]}, v0, vcc
s_barrier
buffer_store_dword {vT[6]}, {vT[7]}, {rWS}, {sT0} offen sc1''')
def hello_load(): e(f'buffer_load_dword {vE}, {vHl}, {rWS}, {sT3} offen sc1')
def hello_check(): e(f'v_xor_b32 {vT[6]}, {sH}, {vE}\nv_cmp_lt_u32 vcc, 15, {vT[6]}')
hello_store(WS_HELLO); vm.inc()
late_small_loads()
for t in range(4, opt['ka']): iK.append(dma_kv(rK, vKD, KB, t))
xstamp(27)
vm.wait(iWQ)
e(f's_lshl_b32 {sT3}, {sA}, 7\ns_add_u32 {sT3}, {sT3}, {WS_HELLO}')
hello_load(); iHe = vm.inc()
for t in range(opt['ka'], opt['kb']): iK.append(dma_kv(rK, vKD, KB, t))
e('s_waitcnt lgkmcnt(0)\ns_barrier')
stamp()
for t in range(3):
    for p in range(4 if t < 2 else 2):
        e(f'ds_read_b64_tr_b16 {aWQ[8*t+2*p:8*t+2*p+2]}, {vWTrQ} offset:{t*8192 + (p>>1)*4096 + (p&1)*256}')
for i in range(4): e(f'v_accvgpr_write_b32 {aWQ[20+i]}, 0')
e('s_waitcnt lgkmcnt(0)')
e('s_mov_b32 exec_lo, 0')
for i in range(4): e(f'v_accvgpr_write_b32 {aWQ[16+i]}, 0')
e('s_mov_b32 exec_lo, -1\ns_barrier\ns_branch L_q')

e('L_top:')
zero(vD[0:4])
prewait((L_H5 - LOC_PASS) & 0xffffffff)
e(f's_add_u32 {sT2}, {sLoc}, {L_H7 - LOC_PASS}')
poll_vec('x')
e('L_q:')
stamp()
vec_to_lds()
gemv(vXRQ, 3, aWQ)
e(f'''v_add_f32 {vT[0]}, {vD[0]}, {vD[1]}
v_add_f32 {vT[1]}, {vD[2]}, {vD[3]}
s_cmp_eq_u32 {sPass}, 0
s_cbranch_scc1 L_hello
L_hello_back:''')
sv = (e.out, e.hist); e.out, e.hist = [], []
e('L_hello:')
vm.wait(iHe)
poll('he', hello_load, hello_check, first=lambda l: e(f's_branch {l}'))
e(f'''v_cmp_ne_u32 vcc, {sHello}, {vE}
s_cmp_eq_u64 vcc, 0
s_cselect_b32 {sMode}, 1, 0
s_cbranch_scc1 L_hello_back''')
e(f'buffer_store_dwordx4 {vOnes}, {vClr}, {rWS}, {sClr} offen sc1\ns_waitcnt vmcnt(0)')
hello_store(WS_HELLO + 0x800)
e(f's_add_u32 {sT3}, {sT3}, 0x800')
poll('h2', hello_load, hello_check)
e('s_branch L_hello_back')
cold.append(e.out); e.out, e.hist = sv
mode_store(f'buffer_store_dwordx2 {vT[0:2]}, {vH1s}, {rWS}, {sH1s} offen'); vm.inc()
stamp()
def h1_loads(B=vB):
    for k in range(4): e(f'buffer_load_dwordx2 {B[2*k:2*k+2]}, {vH1l}, {rWS}, {sH1l} offen offset:{512*k} sc1')
def h1_check(B=vB): sentinel_check([B[0], B[2], B[4], B[6]])
def h1_gap():
    for s in stats_list(): e(s)
    zero(vD)
def h1_use(B):
    e(f'''v_add_f32 {vT[0]}, {B[0]}, {B[2]}
v_add_f32 {vT[1]}, {B[1]}, {B[3]}
v_add_f32 {vT[2]}, {B[4]}, {B[6]}
v_add_f32 {vT[3]}, {B[5]}, {B[7]}''')
def kreads(t):
    for q in range(4): e(f'ds_read_b128 {aK[16*t+4*q:16*t+4*q+4]}, {vKR[q]} offset:{t*4096}')
def h1_first(lstart, ldone):
    lc = lab('c1')
    e(f's_cmp_eq_u32 {sPass}, 0\ns_cbranch_scc1 {lc}')
    sv = (e.out, e.hist); e.out, e.hist = [], []
    e(f'{lc}:\ns_lshl_b32 {sT2}, {sW}, 14')
    h1_gap()
    for t in range(opt['kb'], 16): iK.append(dma_kv(rK, vKD, KB, t))
    vm.wait(iK[7]); kreads(0); kreads(1)
    e(f'v_lshlrev_b32 {vBias}, 16, {vBias}\nv_lshlrev_b32 {vXr0}, 16, {vXr0}')
    nv0, nv1 = opt['nv0'], opt['nv1']
    for t in range(0, nv0 // 2): dma_kv(rV, vVD, VB, t)
    vm.wait(iK[11]); kreads(2)
    for t in range(nv0 // 2, nv0): dma_kv(rV, vVD, VB, t)
    vm.wait(iK[15]); kreads(3)
    stamp()
    h1_loads()
    nt = 0
    if opt['t1']:
        e(f'v_lshlrev_b32 {vT[0]}, 7, {vL}\ns_mov_b64 exec, 7\nbuffer_load_dword {vDum[0]}, {vT[0]}, {rWS}, {sClr} offen sc1\ns_mov_b64 exec, -1')
        nt = 1
    for t in range(nv0, nv0 + nv1): dma_kv(rV, vVD, VB, t)
    e(f's_waitcnt vmcnt({nv1 + nt})')
    e(f's_add_u32 {sT3}, {sClr}, {LOC_PASS}')
    mode_store(f'buffer_store_dwordx4 {vOnes}, {vClr}, {rWS}, {sT3} offen')
    for t in range(nv0 + nv1, 16): dma_kv(rV, vVD, VB, t)
    if opt['pfo']:
        rows = opt['pfo']; per = (rows * 9 + 55) // 56; lp = lab('pf')
        e(f'''s_cmp_lt_u32 {sRole}, 2
s_cbranch_scc1 {lp}
s_mul_i32 {sT0}, {sA}, {512*1152}
s_add_u32 {sT0}, {sT0}, {(512 - rows) * 1152}
s_add_u32 {rM[0]}, {pwo[0]}, {sT0}
s_addc_u32 {rM[1]}, {pwo[1]}, 0
s_mov_b32 {rM[2]}, {rows * 1152}
s_lshl2_add_u32 {sT0}, {sJ}, {sW}
s_sub_u32 {sT0}, {sT0}, 72
s_mul_i32 {sT0}, {sT0}, {per * 128}
v_lshlrev_b32 {vT[8]}, 7, {vL}
s_bfm_b64 exec, {per}, 0
buffer_load_dword {vDum[0]}, {vT[8]}, {rM}, {sT0} offen{PFNT}
s_mov_b64 exec, -1
{lp}:''')
    e(f'''s_and_b32 {sT0}, {sRole}, {2 if OS else 0}
s_lshl2_add_u32 {sT0}, {sA}, {sT0}
s_mul_i32 {sT0}, {sT0}, {128 * 1152}
s_lshl_b32 {sT3}, {sC}, 7
s_add_u32 {sT0}, {sT0}, {sT3}
s_add_u32 {rO[0]}, {pwo[0]}, {sT0}
s_addc_u32 {rO[1]}, {pwo[1]}, 0
s_mov_b32 {rO[2]}, {(NWO*32-1)*1152+128}''')
    h1_check()
    e(f's_cbranch_vccz {ldone}\ns_branch {lstart}')
    cold.append(e.out); e.out, e.hist = sv
poll2('h1', 4, h1_loads, h1_check, vB, vB2, use=h1_use, gap=h1_gap, enter=h1_first)
stamp()
e(f'''v_add_f32 {vT[0]}, {vT[0]}, {vT[2]}
v_add_f32 {vT[1]}, {vT[1]}, {vT[3]}
v_fma_f32 {vT[0]}, -{vMean}, {vT[1]}, {vT[0]}
v_mul_f32 {vT[0]}, {vRstd}, {vT[0]}
v_cvt_pk_bf16_f32 {vT[0]}, {vT[0]}, {vT[0]}
ds_write_b16 {vQW}, {vT[0]}
s_waitcnt lgkmcnt(0)
s_barrier''')
for t in range(4):
    e(f's_mov_b64 exec, {mT[t]}')
    for s in range(2): e(f'ds_read_b128 {vAQ[16*s+4*t:16*s+4*t+4]}, {vQR} offset:{256*s}')
e('s_mov_b64 exec, -1')
for t in range(4):
    for s in range(2):
        e(f's_waitcnt lgkmcnt({7-2*t-s})\nv_smfmac_f32_16x16x64_bf16 {vD[0:4]}, {vAQ[16*s+4*t:16*s+4*t+4]}, {aK[16*t+8*s:16*t+8*s+8]}, {vIdx}')
p0, p1 = vP[0], vP[1]
e(f'''v_add_f32 {p0}, {vD[0]}, {vD[1]}
v_add_f32 {p1}, {vD[2]}, {vD[3]}
v_mul_f32 {p0}, {fl(CSC)}, {p0}
v_mul_f32 {p1}, {fl(CSC)}, {p1}
v_max_f32_dpp {vT[0]}, {p0}, {p0} row_ror:1 {DPP}
v_max_f32_dpp {vT[1]}, {p1}, {p1} row_ror:1 {DPP}''')
fill = [f'v_mov_b32 {vD[i]}, 0' for i in range(4)]
red = wave_reduce('v_max_f32', [vT[0], vT[1]], start=1)
for i in range(0, len(red), 2):
    if fill: e(fill.pop(0))
    e(red[i]); e(red[i+1])
e(f'''v_readlane_b32 {sM0}, {vT[0]}, 63
v_readlane_b32 {sM1}, {vT[1]}, 63
v_subrev_f32 {p0}, {sM0}, {p0}
v_subrev_f32 {p1}, {sM1}, {p1}
v_exp_f32 {p0}, {p0}
v_exp_f32 {p1}, {p1}
v_mov_b32 {vT[2]}, {sM0}
v_mov_b32 {vT[3]}, {sM1}
v_cvt_pk_bf16_f32 {vT[0]}, {p0}, {p1}
s_lshl_b32 {sT0}, {sW}, 3
s_add_u32 {sT0}, {sT0}, {MB}
ds_write_b16 {vPW}, {vT[0]}
ds_write_b16_d16_hi {vPW}, {vT[0]} offset:128
v_mov_b32 {vT[4]}, {sT0}
s_mov_b64 exec, 1
ds_write_b64 {vT[4]}, {vT[2:4]}
s_mov_b64 exec, -1''')
stamp()
def pv_head():
    e('s_waitcnt lgkmcnt(0)\ns_barrier')
    for u in range(4):
        e(f's_mov_b64 exec, {mT[u]}\nds_read_b128 {vAQ[4*u:4*u+4]}, {vQR} offset:{PB - QB + 256*u}')
    e(f'''s_mov_b64 exec, -1
v_mov_b32 {vT[4]}, {MB}
ds_read_b128 {vMM[0:4]}, {vT[4]}
ds_read_b128 {vMM[4:8]}, {vT[4]} offset:16
ds_read_b64 {vMM[8:10]}, {vMR}''')
def pv_meta():
    for s in wave_reduce('v_add_f32', [p0, p1]): e(s)
    e(f'''v_readlane_b32 {sT0}, {p0}, 63
v_readlane_b32 {sT1}, {p1}, 63
v_writelane_b32 {vT[2]}, {sM1}, 1
v_mov_b32 {vT[3]}, {sT0}
v_writelane_b32 {vT[3]}, {sT1}, 1''')
    mode_store(f'buffer_store_dwordx2 {vT[2:4]}, {vH2ms}, {rWS}, {sLoc} offen')
def pv_mm(u):
    for tau in range(2):
        e(f'v_smfmac_f32_16x16x64_bf16 {vD[4*tau:4*tau+4]}, {vAQ[4*u:4*u+4]}, {aV[16*u+8*tau:16*u+8*tau+8]}, {vIdx}')
def v_tr(u):
    for tau in range(2):
        for p in range(4):
            e(f'ds_read_b64_tr_b16 {aV[16*u+8*tau+2*p:16*u+8*tau+2*p+2]}, {vVR[tau]} offset:{u*16384 + (p>>1)*8192 + (p&1)*512}')
lp2 = lab('p2'); lno = lab('no'); ljoin = lab('pj')
e(f's_cmp_lg_u32 {sPass}, 0\ns_cbranch_scc0 {lno}')
pv_head(); pv_meta()
for u in range(4):
    e(f's_waitcnt lgkmcnt({6-u})'); pv_mm(u)
e(f'{ljoin}:')
nst[0] += 1
sv = (e.out, e.hist); e.out, e.hist = [], []
e(f'{lno}:\n' + (f's_bitcmp1_b32 {sRole}, 0' if OS else f's_cmp_lg_u32 {sRole}, 0') + f'\ns_cbranch_scc1 {lno}a')
dma_wo(0, opt['nwo'])
e(f's_waitcnt vmcnt({opt["nwo"]})\ns_branch {lno}b')
e(f'{lno}a:')
if opt['pfo']: e(f's_cmp_ge_u32 {sRole}, 2\ns_cbranch_scc0 {lno}c\ns_waitcnt vmcnt(1)\ns_branch {lno}b\n{lno}c:')
e(f's_waitcnt vmcnt(0)\n{lno}b:')
nst[0] -= 1; stamp()
pv_head(); v_tr(0); pv_meta()
for u in range(4):
    e('s_waitcnt lgkmcnt(0)')
    if u < 3: v_tr(u + 1)
    pv_mm(u)
e(f's_branch {ljoin}')
cold.append(e.out); e.out, e.hist = sv
f0, f1 = vT[4], vT[5]
e(f'''s_waitcnt lgkmcnt(0)
v_max3_f32 {f0}, {vMM[0]}, {vMM[2]}, {vMM[4]}
v_max3_f32 {f1}, {vMM[1]}, {vMM[3]}, {vMM[5]}
v_max_f32 {f0}, {f0}, {vMM[6]}
v_max_f32 {f1}, {f1}, {vMM[7]}
v_sub_f32 {f0}, {vMM[8]}, {f0}
v_sub_f32 {f1}, {vMM[9]}, {f1}
v_exp_f32 {f0}, {f0}
v_exp_f32 {f1}, {f1}
v_add_f32 {vT[0]}, {vD[0]}, {vD[1]}
v_add_f32 {vT[1]}, {vD[2]}, {vD[3]}
v_add_f32 {vT[2]}, {vD[4]}, {vD[5]}
v_add_f32 {vT[3]}, {vD[6]}, {vD[7]}
v_mul_f32 {vT[0]}, {f0}, {vT[0]}
v_mul_f32 {vT[1]}, {f1}, {vT[1]}
v_mul_f32 {vT[2]}, {f0}, {vT[2]}
v_mul_f32 {vT[3]}, {f1}, {vT[3]}
v_permlane32_swap_b32 {vT[0]}, {vT[1]}
v_permlane32_swap_b32 {vT[2]}, {vT[3]}
v_add_f32 {vT[0]}, {vT[0]}, {vT[1]}
v_add_f32 {vT[2]}, {vT[2]}, {vT[3]}
v_permlane16_swap_b32 {vT[0]}, {vT[2]}
v_add_f32 {vT[0]}, {vT[0]}, {vT[2]}
v_cvt_pk_bf16_f32 {vT[0]}, {vT[0]}, {vT[0]}''')
mode_store(f'buffer_store_short {vT[0]}, {vH2os}, {rWS}, {sLoc} offen')
stamp()
base_st = nst[0]
zero(vD)
assert not OS
e(f's_cmp_lg_u32 {sRole}, 0\ns_cbranch_scc1 L_other')
slow.append(f'L_other:\ns_cmp_eq_u32 {sRole}, 2\ns_cbranch_scc1 L_f2\ns_cmp_eq_u32 {sRole}, 1\ns_cbranch_scc1 L_f1\ns_branch L_idle')

lp2 = lab('p2')
e(f's_cmp_lg_u32 {sPass}, 0\ns_cbranch_scc1 {lp2}')
dma_wo(opt['nwo'], NWO)
tail_to_regs(NWO // 2, dst=aO)
e(f'{lp2}:')
stamp()
if OS: e(f's_bitcmp1_b32 {sW}, 1\ns_cbranch_scc1 L_obar')
mv, lv = vT[6], vT[7]
poll2('me', 1, lambda M: e(f'buffer_load_dwordx2 {M[0:2]}, {vH2ml}, {rWS}, {sLoc} offen sc1'),
      lambda M: e(f'v_max_u32 {vT[0]}, {M[0]}, {M[1]}\nv_cmp_eq_u32 vcc, -1, {vT[0]}'), vMM[0:2], vM2,
      use=lambda M: e(f'v_mov_b32 {mv}, {M[0]}\nv_mov_b32 {lv}, {M[1]}'))
def o_loads(B):
    for k in range(4): e(f'buffer_load_dwordx4 {B[4*k:4*k+4]}, {vH2ol}, {rWS}, {sLoc} offen offset:{1024*k} sc1')
def o_gap():
    mc, ma = vT[4], vT[5]
    e(f'''v_max_f32_dpp {mc}, {mv}, {mv} quad_perm:[1,0,3,2] {DPP}
v_max_f32_dpp {mc}, {mc}, {mc} quad_perm:[2,3,0,1] {DPP}
v_max_f32_dpp {ma}, {mc}, {mc} row_ror:4 {DPP}''')
    for s in wave_reduce('v_max_f32', [ma], start=3): e(s)
    e(f'''v_readlane_b32 {sT0}, {ma}, 63
v_subrev_f32 {mv}, {sT0}, {mv}
v_subrev_f32 {mc}, {sT0}, {mc}
v_exp_f32 {mv}, {mv}
v_exp_f32 {mc}, {mc}
v_mul_f32 {lv}, {mv}, {lv}''')
    for s in wave_reduce('v_add_f32', [lv]): e(s)
    e(f'''v_readlane_b32 {sT0}, {lv}, 63
v_rcp_f32 {lv}, {sT0}
v_mul_f32 {mc}, {mc}, {lv}
v_cvt_pk_bf16_f32 {mc}, {mc}, {mc}''')
    for sg in range(2):
        for r in range(4):
            e(f'v_and_b32_dpp {vAC[4*sg+r]}, {mc}, {vMk1 if r & 1 else vMk0} row_newbcast:{8*sg + 4*(r>>1)} {DPP}')
def o_use(B):
    e(f'v_smfmac_f32_16x16x64_bf16 {vD[4:8]}, {vAC[0:4]}, {B[0:8]}, {vIdx2}\nv_smfmac_f32_16x16x64_bf16 {vD[4:8]}, {vAC[4:8]}, {B[8:16]}, {vIdx2}')
poll2('o', 4, o_loads, lambda B: sentinel_check([B[i] for i in range(16)]), vB, vB2, use=o_use, gap=o_gap)
stamp()
e(f'''v_cvt_pk_bf16_f32 {vT[0]}, {vD[4]}, {vD[5]}
v_cvt_pk_bf16_f32 {vT[1]}, {vD[6]}, {vD[7]}
s_mov_b32 exec_hi, 0
ds_write_b64 {vOW}, {vT[0:2]}
L_obar:
s_mov_b64 exec, {m33}
s_waitcnt lgkmcnt(0)
s_barrier''')
gemv(vOR, NWO // 2, aO)
push(vGo)
stamp()
if OS: e(f's_cmp_lg_u32 {sRole}, 0\ns_cbranch_scc1 L_f2')
def r_check(B):
    e(f'v_xor_b32 {vT[0]}, {sH}, {B[0]}')
    for k, s in ((1, sH1), (2, sH2), (3, sH3)): e(f'v_bitop3_b32 {vT[0]}, {B[k]}, {s}, {vT[0]} bitop3:0xbe')
    e(f'v_cmp_ne_u32_sdwa vcc, {vT[0]}, {vZero} src0_sel:BYTE_0 src1_sel:DWORD')
def pick_twin(tch=False):
    if not opt['cal']: return
    l = lab('tw')
    e(f'''s_cmp_lg_u32 {sPass}, 0
s_cbranch_scc1 {l}
s_add_u32 {sT0}, {sLoc}, {L_CAL}
buffer_load_dwordx2 {vT[6:8]}, {vH1l}, {rWS}, {sT0} offen sc1
s_waitcnt vmcnt(0)''')
    for x in wave_reduce('v_min_u32', [vT[6], vT[7]]): e(x)
    e(f'''v_readlane_b32 {sT0}, {vT[6]}, 63
v_readlane_b32 {sT1}, {vT[7]}, 63
s_cmp_lt_u32 {sT1}, {sT0}
s_cselect_b32 {sSel}, 8192, 0''')
    if tch: touch2()
    e(f'{l}:')
def reduce_stage(addr, wide):
    e(f's_add_u32 {sT2}, {sG}, {sSel}')
    z, c = vT[0], vT[1]
    def use(B):
        e(f'v_permlane32_swap_b32 {B[0]}, {B[2]}\nv_permlane32_swap_b32 {B[1]}, {B[3]}')
        if wide: e(f'v_add_f32 {B[0]}, {B[0]}, {B[2]}\nv_add_f32 {B[1]}, {B[1]}, {B[3]}')
        e(f'v_permlane16_swap_b32 {B[0]}, {B[1]}\nv_add_f32 {z}, {B[0]}, {B[1]}')
    poll2('r', 1, lambda B: e(f'buffer_load_dwordx4 {B[0:4]}, {addr}, {rWS}, {sT2} offen sc1'), r_check, vB[0:4], vB2[0:4], use=use)
    e(f'''v_add_f32_dpp {z}, {z}, {z} row_ror:4 {DPP}
v_add_f32_dpp {z}, {z}, {z} row_ror:8 {DPP}
v_cvt_pk_bf16_f32 {z}, {z}, {z}
v_lshlrev_b32 {z}, 16, {z}
v_add_f32 {z}, {z}, {vXr0}
v_mov_b32 {c}, {z}
v_cvt_pk_bf16_f32 {vXr0}, {z}, {z}
v_lshlrev_b32 {vXr0}, 16, {vXr0}
v_permlane16_swap_b32 {z}, {c}
v_cvt_pk_bf16_f32 {z}, {z}, {c}''')
pick_twin()
e(f's_add_u32 {sT3}, {sLoc}, {L_H4}')
reduce_stage(vRl, OS)
mode_store(f'buffer_store_dword {vT[0]}, {vRs}, {rWS}, {sT3} offen')
stamp()
pick_twin(True)
if opt['stamps']: e(f'v_writelane_b32 {vSt}, {sSel}, 29')
lr = lab('r2')
e(f'''s_add_u32 {sT3}, {sLoc}, {L_H7}
s_cmp_eq_u32 {sPass}, 0
s_cbranch_scc1 {lr}
s_and_b32 {sT0}, {sTile}, 7
s_cmp_lg_u32 {sT0}, {sA}
s_cbranch_scc1 L_exit''')
srd(rM, pout[0], pout[1], 1152)
e(f'{lr}:')
prewait(L_H5)
reduce_stage(vRl6, False)
e(f's_cmp_lg_u32 {sPass}, 0\ns_cbranch_scc1 L_final')
mode_store(f'buffer_store_dword {vT[0]}, {vRs}, {rWS}, {sT3} offen')
stamp()
e('s_branch L_next')
e('L_final:')
e(f'buffer_store_dword {vT[0]}, {vRs}, {rM}, 0 offen')
e(f'''s_or_b32 {sT0}, {sTile}, {sA}
s_cmp_lg_u32 {sT0}, 0
s_cbranch_scc1 L_fin2
v_mov_b32 {vT[1]}, {sE1}
s_mov_b64 exec, 1
buffer_store_dword {vT[1]}, off, {rWS}, 0 sc1
s_mov_b64 exec, -1
L_fin2:''')
if opt['stamps']:
    e(f's_waitcnt vmcnt(0)\ns_memrealtime {sSt}\ns_waitcnt lgkmcnt(0)\nv_writelane_b32 {vSt}, {sSt[0]}, 45')
e('s_branch L_exit')

nst[0] = base_st
e('L_f1:')
lp2 = lab('p2')
e(f's_cmp_lg_u32 {sPass}, 0\ns_cbranch_scc1 {lp2}')
touch2()
ffn_tail(9216, opt['g1'], opt['cap1'], opt['gate'])
tail_to_regs(9)
e(f'{lp2}:')
stamp()
prewait(L_H2O)
e(f's_add_u32 {sT2}, {sLoc}, {L_H4}')
poll_vec('x1')
stamp()
vec_to_lds()
gemv(vXR, 9, aT, fill=stats_list())
h, tt, nn, dd = vT[0], vT[1], vT[4], vT[5]
e(f'''v_add_f32 {h}, {vD[0]}, {vD[1]}
v_add_f32 {tt}, {vD[2]}, {vD[3]}
v_fma_f32 {h}, -{vMean}, {tt}, {h}
v_fma_f32 {h}, {vRstd}, {h}, {vBias}
v_mul_f32 {tt}, {fl(-1.4426950408889634)}, {h}
v_min_f32 {tt}, {tt}, -{tt}
v_exp_f32 {tt}, {tt}
v_cmp_lt_f32 vcc, 0, {h}
s_add_u32 {sT2}, {sLoc}, {L_H5}
v_mul_f32 {dd}, {tt}, {tt}
v_cndmask_b32 {nn}, {dd}, 1.0, vcc
v_cndmask_b32 {dd}, 1.0, {dd}, vcc
v_fma_f32 {nn}, 2.0, {tt}, {nn}
v_fma_f32 {dd}, 2.0, {dd}, {nn}
v_rcp_f32 {dd}, {dd}
v_mul_f32 {h}, {h}, {nn}
v_mul_f32 {h}, {h}, {dd}
v_cvt_pk_bf16_f32 {h}, {h}, {h}''')
mode_store(f'buffer_store_short {h}, {vFs}, {rWS}, {sT2} offen')
stamp()
e('s_branch L_next')

nst[0] = base_st + 3
e('L_f2:')
if OS: zero(vD[0:4])
lp2 = lab('p2')
e(f's_cmp_lg_u32 {sPass}, 0\ns_cbranch_scc1 {lp2}')
touch2()
ffn_tail(1152, opt['g2'], opt['cap2'], opt['gate2'])
tail_to_regs(9)
e(f'{lp2}:')
stamp()
prewait(L_H4)
e(f's_add_u32 {sT2}, {sLoc}, {L_H5}')
poll_vec('ac')
stamp()
vec_to_lds()
gemv(vXR, 9, aT)
push(vGs)
stamp()

e('s_branch L_next')
e('L_idle:')
e(f's_cmp_lg_u32 {sPass}, 0\ns_cbranch_scc1 L_exit')
if opt['touch'] and opt['both']:
    n3 = 288 if OS else 144; per = 44 if OS else 29
    e(f'''s_mul_i32 {sT0}, {sTile}, {per}
v_add_u32 {vT[0]}, {sT0}, {vL}
v_cmp_le_u32 vcc, {n3 + 144}, {vT[0]}
v_cndmask_b32 {vT[1]}, 0, 1, vcc
v_mul_u32_u24 {vT[2]}, {n3 + 144}, {vT[1]}
v_sub_u32 {vT[0]}, {vT[0]}, {vT[2]}
s_mul_i32 {sT0}, {sA}, {n3}
s_mul_i32 {sT1}, {sA}, 144
s_add_u32 {sT1}, {sT1}, {7 * n3}
v_mov_b32 {vT[2]}, {sT0}
v_mov_b32 {vT[3]}, {sT1}
v_cmp_le_u32 vcc, {n3}, {vT[0]}
v_cndmask_b32 {vT[2]}, {vT[2]}, {vT[3]}, vcc
v_add_lshl_u32 {vT[0]}, {vT[0]}, {vT[2]}, 7
v_lshrrev_b32 {vT[2]}, 13, {vT[0]}
v_lshl_add_u32 {vT[0]}, {vT[2]}, 13, {vT[0]}
v_mul_u32_u24 {vT[1]}, {G_PASS}, {vT[1]}
v_add_u32 {vT[0]}, {vT[0]}, {vT[1]}
s_add_u32 {sT0}, {sG}, 8192
s_bfm_b64 exec, {per}, 0
buffer_load_dword {vDum[0]}, {vT[0]}, {rWS}, {sG} offen sc1
buffer_load_dword {vDum[0]}, {vT[0]}, {rWS}, {sT0} offen sc1
s_mov_b64 exec, -1''')
if opt['pf3'] or opt['pf1']:
    e(f'''s_mul_i32 {sT0}, {sA}, 1152
s_add_u32 {rM[0]}, {pw1[0]}, {sT0}
s_addc_u32 {rM[1]}, {pw1[1]}, 0
s_mov_b32 {rM[2]}, {575*9216+1152}''')
if opt['pf3']:
    rows = opt['pf3']; per = (rows + 19) // 20
    e(f'''s_lshr_b32 {sT0}, {rM[0]}, 7
s_sub_u32 {sT0}, 3, {sT0}
s_and_b32 {sT0}, {sT0}, 7
s_lshl_b32 {sT0}, {sT0}, 7
s_mul_i32 {sT1}, {sTile}, {per}
s_add_u32 {sT1}, {sT1}, {576 - rows}
v_and_b32 {vT[0]}, 31, {vL}
v_add_u32 {vT[1]}, {sT1}, {vT[0]}
v_mul_u32_u24 {vT[1]}, 9216, {vT[1]}
v_lshrrev_b32 {vT[2]}, 5, {vL}
v_lshl_add_u32 {vT[1]}, {vT[2]}, 10, {vT[1]}
s_cmp_eq_u32 {sT0}, 0
s_cselect_b32 exec_hi, {(1 << per) - 1}, 0
s_mov_b32 exec_lo, {(1 << per) - 1}
buffer_load_dword {vDum[0]}, {vT[1]}, {rM}, {sT0} offen{PFNT}
s_mov_b64 exec, -1''')
if opt['pf1']:
    rows = opt['pf1']; n = (rows * 9 + 1279) // 1280
    e(f'v_lshl_add_u32 {vT[0]}, {sTile}, 6, {vL}')
    for k in range(n):
        e(f'''v_mul_u32_u24 {vT[1]}, 7282, {vT[0]}
v_lshrrev_b32 {vT[1]}, 16, {vT[1]}
v_mul_u32_u24 {vT[2]}, 9, {vT[1]}
v_sub_u32 {vT[2]}, {vT[0]}, {vT[2]}
v_add_u32 {vT[1]}, {576 - rows}, {vT[1]}
v_mul_u32_u24 {vT[1]}, 9216, {vT[1]}
v_lshl_add_u32 {vT[1]}, {vT[2]}, 7, {vT[1]}
buffer_load_dword {vDum[0]}, {vT[1]}, {rM}, 0 offen{PFNT}
v_add_u32 {vT[0]}, 1280, {vT[0]}''')
touch2()
if opt['cal']:
    e('s_waitcnt lgkmcnt(0)')
    for c in (0, 1, 0, 1): cal_sample(c)
    e(f'''v_mov_b32 {vT[0]}, {sCa}
v_mov_b32 {vT[1]}, {sCb}
s_lshl_b32 {sT0}, {sTile}, 3
s_add_u32 {sT0}, {sT0}, {sLoc}
s_add_u32 {sT0}, {sT0}, {L_CAL}
s_mov_b64 exec, 1
buffer_store_dwordx2 {vT[0:2]}, off, {rWS}, {sT0} sc1
s_mov_b64 exec, -1''')
if opt['touch'] and opt['cal'] and not opt['both']:
    n3 = 288 if OS else 144; per = 44 if OS else 29
    e(f'''s_mul_i32 {sT0}, {sTile}, {per}
v_add_u32 {vT[0]}, {sT0}, {vL}
v_cmp_le_u32 vcc, {n3 + 144}, {vT[0]}
v_cndmask_b32 {vT[1]}, 0, 1, vcc
v_mul_u32_u24 {vT[2]}, {n3 + 144}, {vT[1]}
v_sub_u32 {vT[0]}, {vT[0]}, {vT[2]}
s_mul_i32 {sT0}, {sA}, {n3}
s_mul_i32 {sT1}, {sA}, 144
s_add_u32 {sT1}, {sT1}, {7 * n3}
v_mov_b32 {vT[2]}, {sT0}
v_mov_b32 {vT[3]}, {sT1}
v_cmp_le_u32 vcc, {n3}, {vT[0]}
v_cndmask_b32 {vT[2]}, {vT[2]}, {vT[3]}, vcc
v_add_lshl_u32 {vT[0]}, {vT[0]}, {vT[2]}, 7
v_lshrrev_b32 {vT[2]}, 13, {vT[0]}
v_lshl_add_u32 {vT[0]}, {vT[2]}, 13, {vT[0]}
v_mul_u32_u24 {vT[1]}, {G_PASS}, {vT[1]}
v_add_u32 {vT[0]}, {vT[0]}, {vT[1]}
s_cmp_lt_u32 {sCb}, {sCa}
s_cselect_b32 {sT0}, 8192, 0
s_add_u32 {sT0}, {sT0}, {sG}
s_bfm_b64 exec, {per}, 0
buffer_load_dword {vDum[0]}, {vT[0]}, {rWS}, {sT0} offen sc1
s_mov_b64 exec, -1''')
e('L_next:')
e(f'''s_cmp_lg_u32 {sPass}, 0
s_cbranch_scc1 L_exit
s_mov_b32 {sPass}, 1
s_add_u32 {sLoc}, {sLoc}, {LOC_PASS}
s_add_u32 {sH1s}, {sH1s}, {H1_PASS}
s_add_u32 {sH1l}, {sH1l}, {H1_PASS}
s_add_u32 {sG}, {sG}, {G_PASS}
s_branch L_top''')
for c in cold: e.out += c
e.hist = []
for b in slow: e(b)
e('L_exit:')
if opt['stamps']:
    e(f'''s_lshl2_add_u32 {sT0}, s2, {sW}
s_lshl_b32 {sT0}, {sT0}, 8
s_add_u32 {sT0}, {sT0}, {WS_STAMP}
v_writelane_b32 {vSt}, {sSt0[0]}, 30
v_writelane_b32 {vSt}, {sSpin}, 31
v_writelane_b32 {vSt}, {sMode}, 63
v_lshlrev_b32 {vT[0]}, 2, {vL}
buffer_store_dword {vSt}, {vT[0]}, {rWS}, {sT0} offen''')
e('L_end:\ns_endpgm')
acc = (V.next + 3) // 4 * 4
e.raw(f'''.section .rodata,"a"
.p2align 6
.amdhsa_kernel {NAME}_kernel
  .amdhsa_next_free_vgpr {acc + A.next}
  .amdhsa_next_free_sgpr 102
  .amdhsa_accum_offset {acc}
  .amdhsa_group_segment_fixed_size 0
  .amdhsa_kernarg_size 96
  .amdhsa_user_sgpr_count 2
  .amdhsa_user_sgpr_kernarg_segment_ptr 1
  .amdhsa_system_sgpr_workgroup_id_x 1
.end_amdhsa_kernel''')
open(sys.argv[1], 'w').write(e.text())
print('vgpr', V.next, 'agpr', A.next, 'sgpr', S.next, 'pads', e.npad, file=sys.stderr)
```

```python
import sys
from emit import Emit, Alloc, R
NAME = 'interleave_layers__sliding_block_cached__dense_activation_mish__decode'
opt = dict(tsplit=1, kf=4, wpv=0, fast1=0, lead=10, nf1=0, nf2=0, t0f=0, t0m=0x7fff, t0=0, both=0, pfo=0, pf3=384, pf1=0, pfnt=0, t2=1, t1=1, uq=16, ka=10, kb=14, sloc=0, gate2=0, il=1, rot=15, pw=4, p2=1, slp=2, sc0=1, pre=26, osplit=0, cal=1, nv0=6, nv1=8, nwo=8, g1=0, g2=0, cap1=63, cap2=4, gate=0, touch=1, k0=4, stamps=0, nt=1, wnt=1, dbg=0, sel=0)
for a in sys.argv[2:]:
    k, v = a.split('='); opt[k] = int(v)
NT = ' nt' if opt['nt'] else ''
WNT = ' nt' if opt['wnt'] else ''
PFNT = ' nt' if opt['pfnt'] else ''

WS_HELLO = 0x1000
WS_LOC = 0x20000 + opt['sloc'] * 0x20000; LOC_XCD = 0x18000; LOC_PASS = 0xC000
L_H1 = 0x8000; H1_PASS = LOC_PASS
L_H2O = 0; L_H2M = 0x4000; L_H4 = 0x4800; L_H5 = 0x5000; L_H7 = 0x5800; L_CAL = 0x5d00
OS = opt['osplit']
WS_G = 0x200000; G_H6 = (36 if OS else 18) * 16384; G_PASS = G_H6 + 18 * 16384
NWO = 8 if OS else 16
WS_STAMP = 0x600000
WS_SIZE = 0x800000
OOB = 0x40000000
VB = 0; KB = 65536; TB = 65536; WQB = 139264
QB = WQB; PB = WQB + 512; OBUF = WQB + 1536
XB = 157696; XSZ = 1280; MB = XB + 4 * XSZ
CB = MB + 32
LDS_SIZE = 163840
CSC = 0.12751743
import struct
def fl(x): return '0x%08x' % struct.unpack('<I', struct.pack('<f', x))[0]

e = Emit()
S = Alloc('s', 4, 102); V = Alloc('v', 1, 256); A = Alloc('a', 0, 256)
sW = R('s', 3, 1)
sA, sJ, sPass, sMode = [S.get(n) for n in ('a', 'j', 'pass', 'mode')]
rWS, rK, rV, rWQ, rT, rM = [S.get(n, 4, 4) for n in ('rWS', 'rK', 'rV', 'rWQ', 'rT', 'rM')]
rO = rWQ
sP = S.get('ptr', 16, 4); sQ = S.get('ptr2', 8, 4)
mT = [S.get('mT%d' % t, 2) for t in range(4)]; m33 = S.get('m33', 2); sT64 = S.get('t64', 2); sSt = S.get('st', 2); sSt0 = S.get('st0', 2); sStT = S.get('stt')
(sRole, sC, sH, sH1, sH2, sH3, sHello, sSpin, sFF, sRot, sT0, sT1, sT2, sT3, sLoc, sH1s, sH1l, sG, sSel, sTile, sStage, sE1,
 sM0, sM1, sCa, sCb, sClr) = [S.get(n) for n in
  'role c H H1 H2 H3 hello spin ff rot t0 t1 t2 t3 loc h1s h1l g sel tile stage e1 m0v m1v ca cb clr'.split()]
vL, vN, vKG = V.get('l'), V.get('n'), V.get('kg')
vT = V.get('t', 12, 2)
vX = V.get('x', 5, 4)
vAX = V.get('ax', 36, 4)
vAQ = V.get('aq', 32, 4)
vB = V.get('b', 16, 4)
vAC = V.get('ac', 8, 4)
vD = V.get('d', 8, 4)
vMM = V.get('mm', 10, 4)
vKD = V.get('kd', 4); vVD = V.get('vd', 4)
(vWD, vTD, vWTr, vWTr2, vWTrQ, vXW, vXR, vXRQ, vQW, vQR, vPW, vMR, vOW, vOR, vIdx, vIdx2, vMk0, vMk1, vTag,
 vH1s, vH1l, vH2os, vH2ms, vH2ol, vH2ml, vCl, vCl2, vRl, vRs, vFs, vMean, vRstd, vXr0, vXr1, vBias, vE, vSt, vHl) = [V.get(n) for n in
  'wd td wtr wtr2 wtrq xw xr xrq qw qr pw mr ow or idx idx2 mk0 mk1 tag h1s h1l h2os h2ms h2ol h2ml cl cl2 rl rs fs mean rstd xr0 xr1 bias e st hl'.split()]
vB2 = V.get('b2', 16, 4); vQp = V.get('qp', 2, 2); vOnes = V.get('ones', 4, 4); vX2 = V.get('x2', 5, 4); vM2 = V.get('m2', 2, 2); vDum = V.get('dum', 1); vXW2 = V.get('xw2'); vClr = V.get('clr'); vZero = V.get('zero'); vKR = V.get('kr', 4); vVR = V.get('vr', 2); vGs = V.get('gs', 2); vGo = V.get('go', 2); vRl6 = V.get('rl6'); vOD = V.get('od'); vP = V.get('p', 2, 2)
aK = A.get('k', 64, 4); aV = A.get('v', 64, 4); aWQ = A.get('wq', 24, 4); aT = A.get('t', 72, 4); aO = A.get('o', 32, 4) if OS else aT[0:64]

slow = []
cold = []
uid = [0]
def lab(p):
    uid[0] += 1; return f'L_{p}{uid[0]}'

class VM:
    n = 0
    def inc(self, k=1): self.n += k; return self.n - 1
    def wait(self, idx): e(f's_waitcnt vmcnt({self.n - idx - 1})')
vm = VM()

nst = [0]
def stamp():
    if not opt['stamps']: return
    k = nst[0]; nst[0] += 1
    if opt['stamps'] == 2 and k not in (2, 8): return
    if opt['stamps'] == 4 and k not in (2, 7, 8, 9, 11, 12): return
    e(f's_memrealtime {sSt}\ns_lshl_b32 {sStT}, {sPass}, 5\ns_add_u32 m0, {sStT}, {k}\ns_waitcnt lgkmcnt(0)\nv_writelane_b32 {vSt}, {sSt[0]}, m0')

def xstamp(k):
    if opt['stamps'] == 3: e(f's_memrealtime {sSt}\ns_waitcnt lgkmcnt(0)\nv_writelane_b32 {vSt}, {sSt[0]}, {k}')

def mode_store(txt):
    ls, lb = lab('ms'), lab('mb')
    e(f's_cmp_eq_u32 {sMode}, 0\ns_cbranch_scc1 {ls}')
    e('\n'.join(t + (' sc0' if opt['sc0'] else '') for t in txt.split('\n')))
    e(f'{lb}:')
    slow.append(f'{ls}:\n' + '\n'.join(t + ' sc1' for t in txt.split('\n')) + f'\ns_branch {lb}')

def poll(p, loads, check, first=None):
    l0, l1, l2, l3 = lab(p + 'l'), lab(p + 'c'), lab(p + 'd'), lab(p + 'r')
    if first is not None:
        first(l1)
    e(f'{l0}:'); loads()
    e(f's_sub_u32 {sSpin}, {sSpin}, 1\ns_cbranch_scc1 {l3}\ns_waitcnt vmcnt(0)')
    e(f'{l1}:'); check()
    e(f's_cbranch_vccnz {l0}\n{l2}:')
    slow.append(f'{l3}:\ns_mov_b32 {sSpin}, 0\ns_waitcnt vmcnt(0)\ns_branch {l2}')

def poll2(p, n, loads, check, A, B, use=None, gap=None, enter=None):
    l0, lp, la, ld, lt = lab(p + 's'), lab(p + 'l'), lab(p + 'a'), lab(p + 'd'), lab(p + 't')
    if not opt['p2']:
        def first(l1):
            if enter: enter(l0, la)
            e(f'{l0}:')
            if gap: loads(A); gap(); e(f's_waitcnt vmcnt(0)\ns_branch {l1}')
        poll(p, lambda: loads(A), lambda: check(A), first=first)
        e(f'{la}:')
        if use: use(A)
        return
    if enter: enter(l0, la)
    e(f'{l0}:'); loads(A)
    if gap: gap()
    else: e(f's_sleep {opt["slp"]}')
    e(f'{lp}:'); loads(B)
    e(f's_sub_u32 {sSpin}, {sSpin}, 1\ns_cbranch_scc1 {lt}\ns_waitcnt vmcnt({n})')
    check(A); e(f's_cbranch_vccz {la}')
    loads(A); e(f's_waitcnt vmcnt({n})')
    check(B); e(f's_cbranch_vccnz {lp}')
    if use:
        use(B); e(f's_branch {ld}\n{la}:'); e.hist = []; use(A); e(f'{ld}:')
    else:
        for i in range(A.n): e(f'v_mov_b32 {A[i]}, {B[i]}')
        e(f'{la}:')
    slow.append(f'{lt}:\ns_mov_b32 {sSpin}, 0\ns_waitcnt vmcnt(0)\ns_branch {la}')

def touch2():
    if not opt['t2']: return
    e(f'''s_add_u32 {sT0}, {sClr}, {LOC_PASS}
v_lshl_add_u32 {vT[8]}, {vL}, 7, {sT0}
s_add_u32 {sT0}, {sH1s}, {H1_PASS}
v_writelane_b32 {vT[8]}, {sT0}, 2
s_mov_b64 exec, 7
buffer_load_dword {vDum[0]}, {vT[8]}, {rWS}, 0 offen sc1
s_mov_b64 exec, -1''')

def prewait(off):
    if not opt['pw']: return
    l0, l1 = lab('pw'), lab('pd')
    e(f'''s_add_u32 {sT0}, {sLoc}, {off}
{l0}:
buffer_load_dword {vT[0]}, off, {rWS}, {sT0} sc1
s_sub_u32 {sSpin}, {sSpin}, 1
s_cbranch_scc1 {l1}
s_waitcnt vmcnt(0)
v_cmp_eq_u32 vcc, -1, {vT[0]}
s_cbranch_vccz {l1}b
s_sleep {opt['pw']}
s_branch {l0}
{l1}:
s_mov_b32 {sSpin}, 0
{l1}b:''')

def sentinel_check(regs):
    r = list(regs); acc = vT[0]
    e(f'v_max3_u32 {acc}, {r[0]}, {r[1]}, {r[2] if len(r) > 2 else r[1]}'); r = r[3:]
    while r:
        e(f'v_max3_u32 {acc}, {acc}, {r[0]}, {r[1] if len(r) > 1 else r[0]}'); r = r[2:]
    e(f'v_cmp_eq_u32 vcc, -1, {acc}')

DPP = 'row_mask:0xf bank_mask:0xf'
def wave_reduce(op, rs, start=0):
    steps = [f'row_ror:1 {DPP}', f'row_ror:2 {DPP}', f'row_ror:4 {DPP}', f'row_ror:8 {DPP}',
             'row_bcast:15 row_mask:0xa bank_mask:0xf', 'row_bcast:31 row_mask:0xc bank_mask:0xf'][start:]
    out = []
    for st in steps:
        for r in rs: out.append(f'{op}_dpp {r}, {r}, {r} {st}')
    return out

def srd(r, lo, hi, size):
    e(f's_mov_b32 {r[0]}, {lo}\ns_mov_b32 {r[1]}, {hi}\ns_mov_b32 {r[2]}, {size}\ns_mov_b32 {r[3]}, 0x20000')

def compact_loads(r, soff, flag=' sc1', X=None):
    X = X or vX
    e(f'buffer_load_dwordx4 {X[0:4]}, {vCl}, {r}, {soff} offen{flag}')
    e(f'buffer_load_dword {X[4]}, {vCl2}, {r}, {soff} offen{flag}')

def poll_vec(p):
    poll2(p, 2, lambda X: compact_loads(rWS, sT2, X=X), lambda X: sentinel_check([X[i] for i in range(5)]), vX, vX2)

def vec_to_lds():
    e(f'ds_write_b128 {vXW}, {vX[0:4]}')
    e(f'ds_write_b32 {vXW2}, {vX[4]}\ns_mov_b64 exec, {m33}')

def stats_list():
    s, q = vT[2], vT[3]
    o = [f'v_mov_b32 {s}, 0', f'v_mov_b32 {q}, 0']
    for i in range(5):
        o.append(f'v_dot2c_f32_bf16 {s}, 0x3f803f80, {vX[i]}')
        o.append(f'v_dot2c_f32_bf16 {q}, {vX[i]}, {vX[i]}')
    o += wave_reduce('v_add_f32', [s, q])
    o += [f'v_readlane_b32 {sT0}, {s}, 63', f'v_readlane_b32 {sT1}, {q}, 63',
          f'v_mov_b32 {s}, {fl(1/576)}',
          f'v_mul_f32 {vMean}, {sT0}, {s}', f'v_mul_f32 {q}, {sT1}, {s}',
          f'v_fma_f32 {q}, -{vMean}, {vMean}, {q}', f'v_max_f32 {q}, 0, {q}',
          f'v_add_f32 {q}, {fl(1e-5)}, {q}', f'v_rsq_f32 {vRstd}, {q}']
    return o

def interleave(mf, fill, per=2):
    fill = list(fill)
    for m in mf:
        e(m)
        for _ in range(per):
            if fill: e(fill.pop(0))
    for f in fill: e(f)

def cal_sample(c):
    d = sCb if c else sCa
    e(f'''s_memtime {sSt}
s_load_dword {sM0}, {sT64}, {c*8192} glc
s_waitcnt lgkmcnt(0)
s_mov_b32 {sT0}, {sSt[0]}
s_memtime {sSt}
s_waitcnt lgkmcnt(0)
s_sub_u32 {sT0}, {sSt[0]}, {sT0}
s_min_u32 {d}, {d}, {sT0}''')

def zero(r):
    for i in range(r.n): e(f'v_mov_b32 {r[i]}, 0')

def dma_kv(r, voffs, ldsbase, t):
    e(f's_add_u32 m0, {sT2}, {ldsbase + t * 1024}')
    e(f'buffer_load_dwordx4 {voffs[t & 3]}, {r}, {sRot} offen{NT} lds')
    e(f's_add_u32 {sRot}, {sRot}, 4096\ns_and_b32 {sRot}, {sRot}, 65535' if opt['il'] else f's_add_u32 {sRot}, {sRot}, 1024\ns_and_b32 {sRot}, {sRot}, 16383')
    return vm.inc()

def dma_wo(k0, n):
    if n <= k0: return
    e(f's_mul_i32 {sT0}, {sW}, {8 * 1152}\ns_lshl_b32 {sT1}, {sW}, 10\ns_add_u32 m0, {sT1}, {TB + 4096 * k0}')
    if k0: e(f's_add_u32 {sT0}, {sT0}, {32 * 1152 * k0}')
    for k in range(k0, n):
        e(f'buffer_load_dwordx4 {vOD}, {rO}, {sT0} offen{WNT} lds')
        if k != n - 1: e(f's_add_u32 {sT0}, {sT0}, {32 * 1152}\ns_add_u32 m0, m0, 4096')

def ffn_tail(pitch, g, cap, gate, nf):
    l0, l1, l2 = lab('fg'), lab('fr'), lab('fd')
    one = f'buffer_load_dwordx4 {vTD}, {rT}, {sT0} offen{WNT} lds\ns_add_u32 {sT0}, {sT0}, {32 * pitch}\ns_add_u32 m0, m0, 4096\ns_add_u32 {sT3}, {sT3}, 1'
    e(f's_mul_i32 {sT0}, {sW}, {8 * pitch}\ns_lshl_b32 {sT1}, {sW}, 10\ns_add_u32 m0, {sT1}, {TB + 4096 * nf}\ns_mov_b32 {sT3}, {nf}\ns_add_u32 {sT0}, {sT0}, {32 * pitch * nf}')
    if gate:
        e(f'{l0}:\nbuffer_load_dwordx2 {vMM[0:2]}, {vH2ml}, {rWS}, {sLoc} offen sc1')
        for _ in range(g): e(one)
        e(f'''s_waitcnt vmcnt({g})
v_max_u32 {vT[0]}, {vMM[0]}, {vMM[1]}
v_cmp_eq_u32 vcc, -1, {vT[0]}
s_cbranch_vccz {l1}''')
        if g:
            e(f's_cmp_le_u32 {sT3}, {18 - g}\ns_cbranch_scc1 {l0}')
        else:
            e(f's_sub_u32 {sSpin}, {sSpin}, 1\ns_cbranch_scc0 {l0}\ns_mov_b32 {sSpin}, 0')
    e(f'{l1}:\ns_cmp_ge_u32 {sT3}, 18\ns_cbranch_scc1 {l2}')
    e(one)
    if cap < 63: e(f's_waitcnt vmcnt({cap})')
    e(f's_branch {l1}\n{l2}:')

def tail_to_regs(steps, wait=True, dst=None, drain=True):
    dst = dst or aT
    if wait: e('s_waitcnt vmcnt(0)\ns_barrier')
    for t in range(steps):
        for p in range(4):
            off = t * 8192 + (p >> 1) * 4096 + (p & 1) * 256
            ad = vWTr if off < 65536 else vWTr2
            e(f'ds_read_b64_tr_b16 {dst[8*t+2*p:8*t+2*p+2]}, {ad} offset:{off & 65535}')
    if drain: e('s_waitcnt lgkmcnt(0)')

def gemv(addr, steps, w, fill=()):
    for t in range(steps): e(f'ds_read_b128 {vAX[4*t:4*t+4]}, {addr} offset:{t*128}')
    e('s_mov_b64 exec, -1')
    fill = list(fill)
    for _ in range(min(opt['pre'], len(fill))): e(fill.pop(0))
    mf = []
    for t in range(steps):
        mf.append(f's_waitcnt lgkmcnt({steps-1-t})\nv_smfmac_f32_16x16x64_bf16 {vD[0:4]}, {vAX[4*t:4*t+4]}, {w[8*t:8*t+8]}, {vIdx}')
    interleave(mf, fill, per=2)

def push(vo):
    e(f'v_add_f32 {vT[0]}, {vD[0]}, {vD[1]}')
    e(f'v_bfi_b32 {vT[0]}, {sFF}, {vTag}, {vT[0]}')
    e(f's_add_u32 {sT0}, {sG}, 8192')
    for cp in (sG, sT0):
        for h in range(2): e(f'buffer_store_dword {vT[0]}, {vo[h]}, {rWS}, {cp} offen sc1')

hdr = open('cdna_kernels/' + NAME + '.s.ref').read().split('; Override launch')[0]
e.raw(hdr.rstrip())
e.raw(f'; @launch grid=(256,1,1) block=(256,1,1) lds={LDS_SIZE}')
e.raw('.amdgcn_target "amdgcn-amd-amdhsa--gfx950"\n.text')
e.raw(f'.globl {NAME}_kernel\n.p2align 8\n.type {NAME}_kernel,@function\n{NAME}_kernel:')
t0, t1, t2, t3, t4, t5 = [vT[i] for i in range(6)]
if opt['stamps']: e(f's_memrealtime {sSt0}')
e(f'''s_cmp_ge_u32 s2, 256
s_cbranch_scc1 L_end
s_load_dwordx16 {sP}, s[0:1], 0
s_load_dwordx8 {sQ}, s[0:1], 64
s_getpc_b64 {sT64}
L_pc:
v_lshlrev_b32 {t1}, 7, v0
v_min_u32 {t1}, L_end-L_pc, {t1}
global_load_dword {vDum[0]}, {t1}, {sT64}
v_lshrrev_b32 {t0}, 6, v0
v_and_b32 {vL}, 63, v0
v_readfirstlane_b32 {sW}, {t0}
s_and_b32 {sA}, s2, 7
s_lshr_b32 {sJ}, s2, 3
v_and_b32 {vN}, 15, {vL}
v_lshrrev_b32 {vKG}, 4, {vL}
s_mov_b32 {sPass}, 0
s_mov_b32 {sMode}, 1
s_mov_b32 {sSpin}, 400000
s_mov_b32 {sFF}, 0xff''')
vm.inc()
if opt['stamps']:
    e(f'v_mov_b32 {vSt}, 0');
for tau in range(4):
    e(f'v_add_u32 {t0}, {4*tau}, {vKG}\nv_xor_b32 {t0}, {t0}, {vN}\nv_lshlrev_b32 {t0}, 4, {t0}\nv_lshl_add_u32 {vKD[tau]}, {vKG}, 8, {t0}')
e(f'''s_and_b32 {sT0}, {sW}, 1
s_lshl_b32 {sT0}, {sT0}, 2
v_lshrrev_b32 {t1}, 5, {vL}
v_lshl_add_u32 {t1}, {t1}, 1, {sT0}
v_and_b32 {t2}, 7, {vL}
v_xor_b32 {t2}, {t2}, {t1}
v_lshlrev_b32 {t2}, 4, {t2}
v_lshrrev_b32 {t3}, 3, {vL}
v_lshl_add_u32 {vWD}, {t3}, 13, {t2}
v_lshlrev_b32 {vCl}, 4, {vL}
v_lshlrev_b32 {vCl2}, 2, {vL}
v_add_u32 {vCl2}, 1024, {vCl2}
v_mov_b32 {t4}, {OOB}
v_cmp_gt_u32 vcc, 32, {vL}
v_cndmask_b32 {vCl2}, {t4}, {vCl2}, vcc''')
e(f'''s_mul_i32 {sRole}, {sJ}, 57
s_lshr_b32 {sRole}, {sRole}, 9
s_mul_i32 {sT0}, {sRole}, 9
s_sub_u32 {sC}, {sJ}, {sT0}
s_lshl_b32 {sTile}, {sC}, 2
s_add_u32 {sTile}, {sTile}, {sW}
s_and_b32 {sRot}, {sJ}, {opt['rot'] if opt['il'] else 3}
s_lshl_b32 {sRot}, {sRot}, 12''')
if opt['il']: e(f's_lshl_b32 {sT0}, {sW}, 10\ns_add_u32 {sRot}, {sRot}, {sT0}')
e(f'''s_lshr_b32 {sT0}, {sJ}, 4
s_lshl1_add_u32 {sT0}, {sA}, {sT0}
s_lshl_b32 {sT0}, {sT0}, 23
s_and_b32 {sT1}, {sJ}, 15
s_lshl_b32 {sT1}, {sT1}, 16
s_add_u32 {sT0}, {sT0}, {sT1}
s_lshl_b32 {sT2}, {sW}, 14
s_add_u32 {sT0}, {sT0}, {28672*256}''')
if not opt['il']: e(f's_add_u32 {sT0}, {sT0}, {sT2}')
e(f'''s_and_b32 {sT1}, {sJ}, 3
s_mul_i32 {sT1}, {sT1}, {144*8192}
s_xor_b32 {sT3}, {sJ}, {opt['uq']}
s_lshr_b32 {sT3}, {sT3}, 2
s_lshl_b32 {sT3}, {sT3}, 7
s_add_u32 {sT1}, {sT1}, {sT3}
s_lshl_b32 {sT3}, {sA}, 10
s_add_u32 {sT1}, {sT1}, {sT3}
s_mul_i32 {sLoc}, {sA}, {LOC_XCD}
s_add_u32 {sLoc}, {sLoc}, {WS_LOC}
s_lshl2_add_u32 {sClr}, {sJ}, {sW}
s_mul_i32 {sClr}, {sClr}, 256
s_add_u32 {sClr}, {sClr}, {sLoc}
v_mov_b32 {vOnes[0]}, -1
v_mov_b32 {vOnes[1]}, -1
v_mov_b32 {vOnes[2]}, -1
v_mov_b32 {vOnes[3]}, -1
v_cmp_gt_u32 vcc, 16, {vL}
v_cndmask_b32 {vClr}, {t4}, {vCl}, vcc
s_waitcnt lgkmcnt(0)''')
xstamp(20)
px, pk, pv, pwq, pwo, pbx, pw1, pb1 = [sP[2*i:2*i+2] for i in range(8)]
pw2, pout, pdbg, pws = [sQ[2*i:2*i+2] for i in range(4)]
srd(rWS, pws[0], pws[1], WS_SIZE)
e(f'buffer_load_dword {vE}, off, {rWS}, 0 sc1'); iE = vm.inc()
if opt['t0']:
    e(f'''s_add_u32 {sG}, {pws[0]}, 0x1fffff
s_and_b32 {sG}, {sG}, 0xffe00000
s_sub_u32 {sG}, {sG}, {pws[0]}
s_add_u32 {sG}, {sG}, {WS_G}
s_lshl2_add_u32 {sT3}, s2, {sW}
s_mul_i32 {sT3}, {sT3}, {9 * 128}
s_add_u32 {sT3}, {sT3}, {sG}
v_lshl_add_u32 {t0}, {vL}, 7, {sT3}
s_sub_u32 {sT3}, {sClr}, {9 * 128}
v_lshl_add_u32 {t1}, {vL}, 7, {sT3}
v_add_u32 {t5}, {LOC_PASS - 384}, {t1}
v_cmp_gt_u32 vcc, 12, {vL}
v_cndmask_b32 {t1}, {t5}, {t1}, vcc
v_cmp_gt_u32 vcc, 9, {vL}
v_cndmask_b32 {t0}, {t1}, {t0}, vcc
s_mov_b64 exec, {opt['t0m']}
buffer_load_dword {vDum[0]}, {t0}, {rWS}, 0 offen{['', ' nt', ' sc1'][opt['t0f']]}
s_mov_b64 exec, -1'''); vm.inc()
e(f'buffer_store_dwordx4 {vOnes}, {vClr}, {rWS}, {sClr} offen'); iClr = vm.inc()
e(f's_add_u32 {rK[0]}, {pk[0]}, {sT0}\ns_addc_u32 {rK[1]}, {pk[1]}, 0\ns_mov_b32 {rK[2]}, {65536 if opt["il"] else 16384}\ns_mov_b32 {rK[3]}, 0x20000')
iK = []
for t in range(opt['kf']):
    iK.append(dma_kv(rK, vKD, KB, t))
    if t == 0: xstamp(21)
xstamp(22)
e(f's_add_u32 {rWQ[0]}, {pwq[0]}, {sT1}\ns_addc_u32 {rWQ[1]}, {pwq[1]}, 0\ns_mov_b32 {rWQ[2]}, {143*8192+128}\ns_mov_b32 {rWQ[3]}, 0x20000')
e(f's_add_u32 {rV[0]}, {pv[0]}, {sT0}\ns_addc_u32 {rV[1]}, {pv[1]}, 0\ns_mov_b32 {rV[2]}, {65536 if opt["il"] else 16384}\ns_mov_b32 {rV[3]}, 0x20000')
e(f's_lshl_b32 {sT0}, {sW}, 16\ns_lshl_b32 {sT1}, {sW}, 10\ns_add_u32 m0, {sT1}, {WQB}')
for k in range(4):
    e(f'buffer_load_dwordx4 {vWD}, {rWQ}, {sT0} offen{WNT} lds'); vm.inc()
    if k < 3: e(f's_add_u32 {sT0}, {sT0}, {32*8192}\ns_add_u32 m0, m0, 4096')
for t in range(opt['kf'], 4): iK.append(dma_kv(rK, vKD, KB, t))
xstamp(24)
stamp()
def late_small_loads():
    global iXr, iBias, iWQ
    e(f's_and_b32 {sT1}, {sW}, 1\ns_add_u32 {sT1}, {sT1}, 16\ns_lshl_b32 {sT0}, {sT1}, 16\ns_lshl_b32 {sT1}, {sT1}, 10\ns_add_u32 m0, {sT1}, {WQB}')
    e(f'buffer_load_dwordx4 {vWD}, {rWQ}, {sT0} offen{WNT} lds'); vm.inc()
    srd(rM, px[0], px[1], 1152)
    compact_loads(rM, 0, ''); iWQ = vm.inc(2)
    e(f'''v_and_b32 {t0}, 3, {vL}
v_lshl_add_u32 {t0}, {t0}, 2, {vKG}
s_lshl_b32 {sT0}, {sTile}, 5
v_lshl_add_u32 {t0}, {t0}, 1, {sT0}
buffer_load_ushort {vXr0}, {t0}, {rM}, 0 offen
v_and_b32 {t1}, 0x1c, {vL}
v_cmp_eq_u32 vcc, 0, {t1}
v_cndmask_b32 {vRs}, {t4}, {t0}, vcc'''); iXr = vm.inc()
    e(f'''s_mov_b32 {rM[0]}, {pb1[0]}
s_mov_b32 {rM[1]}, {pb1[1]}
s_mov_b32 {rM[2]}, 9216
v_lshl_add_u32 {t0}, {vN}, 1, {sT0}
s_mul_i32 {sT1}, {sA}, 1152
buffer_load_ushort {vBias}, {t0}, {rM}, {sT1} offen
v_cmp_gt_u32 vcc, 16, {vL}
v_cndmask_b32 {vFs}, {t4}, {t0}, vcc'''); iBias = vm.inc()
e(f'''s_cmp_eq_u32 {sRole}, 1
s_cselect_b32 {rT[0]}, {pw1[0]}, {pw2[0]}
s_cselect_b32 {rT[1]}, {pw1[1]}, {pw2[1]}
s_mov_b32 {sT0}, {576*1152}
s_mov_b32 {sT1}, 1152
s_mov_b32 {rT[2]}, {575*1152+128}
s_cselect_b32 {sT0}, 1152, {sT0}
s_cselect_b32 {sT1}, 9216, {sT1}
s_cselect_b32 {rT[2]}, {575*9216+128}, {rT[2]}
s_mul_i32 {sT0}, {sT0}, {sA}
s_lshl_b32 {sT3}, {sC}, 7
s_add_u32 {sT0}, {sT0}, {sT3}
s_add_u32 {rT[0]}, {rT[0]}, {sT0}
s_addc_u32 {rT[1]}, {rT[1]}, 0
s_mov_b32 {rT[3]}, 0x20000
v_mul_lo_u32 {vTD}, {t3}, {sT1}
v_add_u32 {vTD}, {vTD}, {t2}
v_mul_u32_u24 {vOD}, 1152, {t3}
v_add_u32 {vOD}, {vOD}, {t2}''')
for t in range(4):
    e(f's_mov_b32 {mT[t][0]}, {0x000F000F << (4*t)}\ns_mov_b32 {mT[t][1]}, {0x000F000F << (4*t)}')
e(f's_mov_b32 {m33[0]}, 0x33333333\ns_mov_b32 {m33[1]}, 0x33333333')
for tau in range(4):
    e(f'v_and_b32 {t0}, 1, {vKG}\nv_lshlrev_b32 {t0}, 1, {t0}\nv_or_b32 {t0}, {tau << 2}, {t0}\nv_xor_b32 {t0}, {t0}, {vN}\nv_lshlrev_b32 {t0}, 4, {t0}\nv_lshl_add_u32 {vVD[tau]}, {vKG}, 8, {t0}')
e(f's_add_u32 {sT0}, {sT2}, {KB}')
for q in range(4):
    e(f'v_add_u32 {t0}, {4*q}, {vKG}\nv_xor_b32 {t0}, {t0}, {vN}\nv_lshlrev_b32 {t0}, 4, {t0}\nv_lshl_add_u32 {t0}, {vN}, 8, {t0}\nv_add_u32 {vKR[q]}, {sT0}, {t0}')
e(f'''v_lshrrev_b32 {t0}, 5, {vL}
v_lshlrev_b32 {t0}, 4, {t0}
v_and_b32 {t1}, 1, {vKG}
v_lshl_add_u32 {t0}, {t1}, 2, {t0}
v_bfe_u32 {t2}, {vL}, 2, 1
v_add_u32 {t0}, {t0}, {t2}
v_bfe_u32 {t3}, {vL}, 3, 1
v_lshl_add_u32 {t0}, {t3}, 3, {t0}
v_lshl_add_u32 {t1}, {t3}, 1, {t1}
v_and_b32 {t3}, 3, {vL}
v_lshlrev_b32 {t3}, 3, {t3}
v_xor_b32 {t5}, {sW}, {t1}
v_lshl_add_u32 {t5}, {t5}, 5, {t3}
v_lshl_add_u32 {t5}, {t0}, 7, {t5}
v_add_u32 {vWTr}, {TB}, {t5}
v_add_u32 {vWTr2}, {TB + 65536}, {t5}
v_add_u32 {vWTrQ}, {WQB}, {t5}
v_lshl_add_u32 {t1}, {t1}, 1, {t2}
s_lshl_b32 {sT0}, {sW}, 1
v_xor_b32 {t1}, {sT0}, {t1}
v_lshl_add_u32 {t0}, {t0}, 8, {t3}
v_lshl_add_u32 {vVR[0]}, {t1}, 5, {t0}
v_xor_b32 {t1}, 1, {t1}
v_lshl_add_u32 {vVR[1]}, {t1}, 5, {t0}''')
e(f'''s_mul_i32 {sT0}, {sW}, {XSZ}
s_add_u32 {sT0}, {sT0}, {XB}
v_add_u32 {vXW}, {sT0}, {vCl}
s_add_u32 {sT1}, {sT0}, 1024
v_lshl_add_u32 {vXW2}, {vL}, 2, {sT1}
v_and_b32 {t0}, 1, {vL}
v_lshlrev_b32 {t0}, 4, {t0}
v_lshl_add_u32 {t0}, {vKG}, 5, {t0}
v_add_u32 {vXR}, {sT0}, {t0}
s_and_b32 {sT1}, {sJ}, 3
s_mul_i32 {sT1}, {sT1}, 288
v_add_u32 {vXRQ}, {sT1}, {vXR}
v_add_u32 {vOR}, {OBUF}, {t0}
v_bfe_u32 {t1}, {vL}, 1, 1
v_lshl_add_u32 {t0}, {t1}, 7, {t0}
v_add_u32 {vQR}, {QB}, {t0}
v_lshlrev_b32 {t0}, 5, {vKG}
v_lshl_add_u32 {t0}, {t1}, 4, {t0}
v_bfe_u32 {t1}, {vL}, 2, 2
v_lshl_add_u32 {t0}, {t1}, 2, {t0}
v_and_b32 {t1}, 1, {vL}
v_lshl_add_u32 {t0}, {t1}, 1, {t0}
s_and_b32 {sT0}, {sW}, 1
s_lshl_b32 {sT0}, {sT0}, 8
s_lshr_b32 {sT1}, {sW}, 1
s_lshl_b32 {sT1}, {sT1}, 7
s_add_u32 {sT0}, {sT0}, {sT1}
s_add_u32 {sT0}, {sT0}, {QB}
v_add_u32 {vQW}, {sT0}, {t0}
s_lshl_b32 {sT0}, {sW}, 8
s_add_u32 {sT1}, {sT0}, {PB}
v_lshl_add_u32 {vPW}, {vL}, 1, {sT1}
v_lshlrev_b32 {t0}, 3, {vKG}
v_add_u32 {vMR}, {MB}, {t0}
s_and_b32 {sT1}, {sT0}, {256 if OS else 1023}
s_add_u32 {sT1}, {sT1}, {OBUF}
v_and_b32 {t0}, 8, {t0}
v_lshl_add_u32 {t0}, {vN}, 4, {t0}
v_add_u32 {vOW}, {sT1}, {t0}''')
e(f'''v_and_b32 {t0}, 1, {vL}
v_mov_b32 {t1}, 0xaaaa
v_mul_u32_u24 {t1}, {t0}, {t1}
v_add_u32 {vIdx}, 0x4444, {t1}
v_and_b32 {t0}, 3, {vL}
v_xor_b32 {t1}, 1, {t0}
v_lshl_add_u32 {t0}, {t1}, 2, {t0}
v_mul_u32_u24 {vIdx2}, 0x1111, {t0}
v_bfe_u32 {t0}, {vL}, 2, 1
v_mul_u32_u24 {vMk1}, 0xffff, {t0}
v_xor_b32 {vMk0}, 0xffff, {vMk1}''')
e(f'''v_lshlrev_b32 {vH1l}, 3, {vL}
v_cmp_gt_u32 vcc, 16, {vL}
v_cndmask_b32 {vH1s}, {t4}, {vH1l}, vcc
s_add_u32 {sT0}, {sLoc}, {L_H1}
s_xor_b32 {sT1}, {sJ}, {opt['uq']}
s_lshl_b32 {sT1}, {sT1}, 9
s_add_u32 {sH1s}, {sT0}, {sT1}
s_lshl_b32 {sT1}, {sW}, 7
s_add_u32 {sH1s}, {sH1s}, {sT1}
s_lshr_b32 {sT1}, {sJ}, 4
s_lshl2_add_u32 {sT3}, {sT1}, {sW}
s_lshl_b32 {sT3}, {sT3}, 11
s_add_u32 {sH1l}, {sT0}, {sT3}
s_lshl_b32 {sT1}, {sT1}, 1
s_and_b32 {sT0}, {sJ}, 15
v_lshrrev_b32 {t0}, 5, {vL}
v_add_u32 {t0}, {sT1}, {t0}
v_and_b32 {t1}, 31, {vL}
v_lshlrev_b32 {vHl}, 2, {t1}
v_lshlrev_b32 {t1}, 1, {t1}
v_lshl_add_u32 {t1}, {t0}, 12, {t1}
s_lshl_b32 {sT3}, {sT0}, 2
s_add_u32 {sT3}, {sT3}, {sW}
s_lshl_b32 {sE1}, {sT3}, 6
v_add_u32 {vH2os}, {sE1}, {t1}
v_add_u32 {t0}, {sT1}, {vL}
v_lshlrev_b32 {t0}, 9, {t0}
s_lshl_b32 {sE1}, {sT3}, 3
s_add_u32 {sE1}, {sE1}, {L_H2M}
v_add_u32 {t0}, {sE1}, {t0}
v_cmp_gt_u32 vcc, 2, {vL}
v_cndmask_b32 {vH2ms}, {t4}, {t0}, vcc
s_and_b32 {sT0}, {sW}, 1
s_and_b32 {sT3}, {sRole}, 2
s_add_u32 {sT3}, {sT3}, {sT0}
s_cmp_eq_u32 {sRole}, {1 if OS else sRole}
s_cselect_b32 {sT3}, {sW}, {sT3}
s_lshl_b32 {sT0}, {sT3}, 12
v_add_u32 {vH2ol}, {sT0}, {vCl}
v_lshrrev_b32 {t0}, 3, {vN}
v_lshlrev_b32 {t0}, 3, {t0}
v_lshl_add_u32 {t0}, {vKG}, 1, {t0}
v_bfe_u32 {t1}, {vL}, 2, 1
v_add_u32 {t0}, {t0}, {t1}
v_and_b32 {t1}, 3, {vL}
v_lshlrev_b32 {t1}, 3, {t1}
v_lshl_add_u32 {t0}, {t0}, 5, {t1}
s_lshl_b32 {sT0}, {sT3}, 9
s_add_u32 {sT0}, {sT0}, {L_H2M}
v_add_u32 {vH2ml}, {sT0}, {t0}''')
def chunked(dst, lin):
    e(f'v_lshrrev_b32 {t5}, 13, {lin}\nv_lshlrev_b32 {t5}, 13, {t5}\nv_add_u32 {dst}, {t5}, {lin}')
for h in range(2):
    e(f'''v_add_u32 {t0}, {4*h}, {vKG}
v_mul_u32_u24 {t0}, 36, {t0}
v_add_u32 {t0}, {sTile}, {t0}
s_lshl_b32 {sT0}, {sA}, 6
v_lshl_add_u32 {t1}, {vN}, 2, {sT0}
v_lshl_add_u32 {t1}, {t0}, 9, {t1}''')
    chunked(vGs[h], t1)
    if not OS:
        e(f'v_mov_b32 {vGo[h]}, {vGs[h]}\nv_add_u32 {vGs[h]}, {G_H6}, {vGs[h]}')
        continue
    e(f'''v_add_u32 {vGs[h]}, {G_H6}, {vGs[h]}
s_lshr_b32 {sT0}, {sRole}, 1
s_lshl1_add_u32 {sT0}, {sA}, {sT0}
s_lshl_b32 {sT0}, {sT0}, 6
v_lshl_add_u32 {t1}, {vN}, 2, {sT0}
v_lshl_add_u32 {t1}, {t0}, 10, {t1}''')
    chunked(vGo[h], t1)
e(f'''s_mul_i32 {sT0}, {sA}, 36
s_add_u32 {sT0}, {sT0}, {sTile}
s_lshl_b32 {sT0}, {sT0}, 9
v_and_b32 {t0}, 31, {vL}
v_lshl_add_u32 {t0}, {t0}, 4, {sT0}''')
chunked(vRl6, t0)
if OS:
    e(f'''v_add_u32 {vRl6}, {G_H6}, {vRl6}
s_lshl_b32 {sT0}, {sT0}, 1
v_add_u32 {t0}, {sT0}, {vCl}''')
    chunked(vRl, t0)
else:
    e(f'v_mov_b32 {vRl}, {vRl6}\nv_add_u32 {vRl6}, {G_H6}, {vRl6}')
e(f'''s_add_u32 {sG}, {pws[0]}, 0x1fffff
s_and_b32 {sG}, {sG}, 0xffe00000
s_sub_u32 {sG}, {sG}, {pws[0]}
s_add_u32 {sG}, {sG}, {WS_G}
s_mov_b32 {sSel}, {opt['sel'] * 8192}''')
if opt['cal']:
    e(f'''v_readfirstlane_b32 {sT0}, {vRl}
s_add_u32 {sT0}, {sT0}, {sG}
s_add_u32 {sT64[0]}, {pws[0]}, {sT0}
s_addc_u32 {sT64[1]}, {pws[1]}, 0
s_load_dword {sM0}, {sT64}, 0 glc
s_load_dword {sM1}, {sT64}, 8192 glc
s_mov_b32 {sCa}, -1
s_mov_b32 {sCb}, -1''')
for i in range(36): e(f'v_mov_b32 {vAX[i]}, 0x3f803f80')
zero(vAQ); zero(vD[0:4]); zero(vZero)
xstamp(25)
vm.wait(iClr)
xstamp(26)
e(f'''v_readfirstlane_b32 {sE1}, {vE}
s_getreg_b32 {sT0}, hwreg(HW_REG_XCC_ID, 0, 4)
s_add_u32 {sE1}, {sE1}, 1
s_mul_i32 {sH}, {sE1}, 0x01010101
s_lshr_b32 {sH1}, {sH}, 8
s_lshr_b32 {sH2}, {sH}, 16
s_lshr_b32 {sH3}, {sH}, 24
s_andn2_b32 {sHello}, {sH}, 15
s_or_b32 {sHello}, {sHello}, {sT0}
v_and_b32 {t0}, 3, {vL}
v_lshlrev_b32 {t0}, 3, {t0}
v_bfe_u32 {vTag}, {sH}, {t0}, 8''')
def hello_store(off):
    e(f'''s_lshl_b32 {sT0}, {sA}, 7
s_lshl2_add_u32 {sT0}, {sJ}, {sT0}
s_add_u32 {sT0}, {sT0}, {off}
v_mov_b32 {vT[6]}, {sHello}
v_mov_b32 {vT[7]}, {OOB}
v_cmp_eq_u32 vcc, 0, v0
v_cndmask_b32 {vT[7]}, {vT[7]}, v0, vcc
s_barrier
buffer_store_dword {vT[6]}, {vT[7]}, {rWS}, {sT0} offen sc1''')
def hello_load(): e(f'buffer_load_dword {vE}, {vHl}, {rWS}, {sT3} offen sc1')
def hello_check(): e(f'v_xor_b32 {vT[6]}, {sH}, {vE}\nv_cmp_lt_u32 vcc, 15, {vT[6]}')
hello_store(WS_HELLO); vm.inc()
late_small_loads()
for t in range(4, opt['ka']): iK.append(dma_kv(rK, vKD, KB, t))
xstamp(27)
vm.wait(iWQ)
for t in range(opt['ka'], opt['kb']): iK.append(dma_kv(rK, vKD, KB, t))
e('s_waitcnt lgkmcnt(0)\ns_barrier')
stamp()
for t in range(3):
    for p in range(4 if t < 2 else 2):
        e(f'ds_read_b64_tr_b16 {aWQ[8*t+2*p:8*t+2*p+2]}, {vWTrQ} offset:{t*8192 + (p>>1)*4096 + (p&1)*256}')
for i in range(4): e(f'v_accvgpr_write_b32 {aWQ[20+i]}, 0')
e('s_waitcnt lgkmcnt(0)')
e('s_mov_b32 exec_lo, 0')
for i in range(4): e(f'v_accvgpr_write_b32 {aWQ[16+i]}, 0')
e('s_mov_b32 exec_lo, -1\ns_barrier\ns_branch L_q')

e('L_top:')
zero(vD[0:4])
prewait((L_H5 - LOC_PASS) & 0xffffffff)
e(f's_add_u32 {sT2}, {sLoc}, {L_H7 - LOC_PASS}')
poll_vec('x')
e('L_q:')
stamp()
vec_to_lds()
gemv(vXRQ, 3, aWQ)
e(f'''v_add_f32 {vT[0]}, {vD[0]}, {vD[1]}
v_add_f32 {vQp[1]}, {vD[2]}, {vD[3]}
v_bfi_b32 {vQp[0]}, {sFF}, {vTag}, {vT[0]}''')
mode_store(f'buffer_store_dwordx2 {vQp}, {vH1s}, {rWS}, {sH1s} offen'); vm.inc()
stamp()
def h1_loads(B=vB):
    for k in range(4): e(f'buffer_load_dwordx2 {B[2*k:2*k+2]}, {vH1l}, {rWS}, {sH1l} offen offset:{512*k} sc1')
def h1_check(B=vB):
    e(f'v_xor_b32 {vT[0]}, {B[0]}, {vTag}')
    for k in (2, 4, 6): e(f'v_bitop3_b32 {vT[0]}, {B[k]}, {vTag}, {vT[0]} bitop3:0xbe')
    e(f'v_cmp_ne_u32_sdwa vcc, {vT[0]}, {vZero} src0_sel:BYTE_0 src1_sel:DWORD')
def h1_gap():
    for s in stats_list(): e(s)
    zero(vD)
def h1_use(B):
    e(f'''v_add_f32 {vT[0]}, {B[0]}, {B[2]}
v_add_f32 {vT[1]}, {B[1]}, {B[3]}
v_add_f32 {vT[2]}, {B[4]}, {B[6]}
v_add_f32 {vT[3]}, {B[5]}, {B[7]}''')
def kreads(t):
    for q in range(4): e(f'ds_read_b128 {aK[16*t+4*q:16*t+4*q+4]}, {vKR[q]} offset:{t*4096}')
def h1_first(lstart, ldone):
    lc = lab('c1')
    e(f's_cmp_eq_u32 {sPass}, 0\ns_cbranch_scc1 {lc}')
    sv = (e.out, e.hist); e.out, e.hist = [], []
    e(f'{lc}:\ns_lshl_b32 {sT2}, {sW}, 14')
    h1_gap()
    nv0, lead = opt['nv0'], opt['lead']
    todo = [('K', t) for t in range(opt['kb'], 16)] + [('V', t) for t in range(nv0)] + [('P', 0)] + [('V', t) for t in range(nv0, 16)]
    pos = {('K', t): t for t in range(16)}; pos.update({('V', t): 16 + t for t in range(16)}); pos[('P', 0)] = 15 + nv0 + 0.5
    idx = {('K', t): iK[t] for t in range(opt['kb'])}
    def issue_to(p):
        while todo and pos[todo[0]] <= p:
            it = todo.pop(0)
            if it[0] == 'K': idx[it] = dma_kv(rK, vKD, KB, it[1])
            elif it[0] == 'V': idx[it] = dma_kv(rV, vVD, VB, it[1])
            else:
                e(f's_lshl_b32 {sT3}, {sA}, 7\ns_add_u32 {sT3}, {sT3}, {WS_HELLO}')
                hello_load(); h1_loads(); idx[it] = vm.inc(5)
                if opt['t1']:
                    e(f'v_lshlrev_b32 {vT[0]}, 7, {vL}\ns_mov_b64 exec, 3\nbuffer_load_dword {vDum[0]}, {vT[0]}, {rWS}, {sClr} offen sc1\ns_mov_b64 exec, -1')
                    vm.inc()
    issue_to(7 + lead); vm.wait(idx[('K', 7)]); kreads(0); kreads(1)
    e(f'v_lshlrev_b32 {vBias}, 16, {vBias}\nv_lshlrev_b32 {vXr0}, 16, {vXr0}')
    issue_to(11 + lead); vm.wait(idx[('K', 11)]); kreads(2)
    issue_to(15 + lead); vm.wait(idx[('K', 15)]); kreads(3)
    stamp()
    issue_to(15 + nv0 + opt['nv1']); vm.wait(idx[('P', 0)])
    poll('he', hello_load, hello_check, first=lambda l: e(f's_branch {l}'))
    e(f'''v_cmp_ne_u32 vcc, {sHello}, {vE}
s_cmp_eq_u64 vcc, 0
s_cselect_b32 {sMode}, 1, 0
s_cbranch_scc1 L_samedie''')
    e(f'''buffer_store_dwordx4 {vOnes}, {vClr}, {rWS}, {sClr} offen sc1
s_waitcnt vmcnt(0)''')
    hello_store(WS_HELLO + 0x800)
    e(f's_add_u32 {sT3}, {sT3}, 0x800')
    poll('h2', hello_load, hello_check)
    e(f'buffer_store_dwordx2 {vQp}, {vH1s}, {rWS}, {sH1s} offen sc1\nL_samedie:')
    e(f's_add_u32 {sT3}, {sClr}, {LOC_PASS}')
    mode_store(f'buffer_store_dwordx4 {vOnes}, {vClr}, {rWS}, {sT3} offen')
    issue_to(99)
    if opt['pfo']:
        rows = opt['pfo']; per = (rows * 9 + 55) // 56; lp = lab('pf')
        e(f'''s_cmp_lt_u32 {sRole}, 2
s_cbranch_scc1 {lp}
s_mul_i32 {sT0}, {sA}, {512*1152}
s_add_u32 {sT0}, {sT0}, {(512 - rows) * 1152}
s_add_u32 {rM[0]}, {pwo[0]}, {sT0}
s_addc_u32 {rM[1]}, {pwo[1]}, 0
s_mov_b32 {rM[2]}, {rows * 1152}
s_lshl2_add_u32 {sT0}, {sJ}, {sW}
s_sub_u32 {sT0}, {sT0}, 72
s_mul_i32 {sT0}, {sT0}, {per * 128}
v_lshlrev_b32 {vT[8]}, 7, {vL}
s_bfm_b64 exec, {per}, 0
buffer_load_dword {vDum[0]}, {vT[8]}, {rM}, {sT0} offen{PFNT}
s_mov_b64 exec, -1
{lp}:''')
    e(f'''s_and_b32 {sT0}, {sRole}, {2 if OS else 0}
s_lshl2_add_u32 {sT0}, {sA}, {sT0}
s_mul_i32 {sT0}, {sT0}, {128 * 1152}
s_lshl_b32 {sT3}, {sC}, 7
s_add_u32 {sT0}, {sT0}, {sT3}
s_add_u32 {rO[0]}, {pwo[0]}, {sT0}
s_addc_u32 {rO[1]}, {pwo[1]}, 0
s_mov_b32 {rO[2]}, {(NWO*32-1)*1152+128}''')
    h1_check()
    e(f's_cbranch_vccz {ldone}\ns_branch {lstart}')
    cold.append(e.out); e.out, e.hist = sv
poll2('h1', 4, h1_loads, h1_check, vB, vB2, use=h1_use, gap=h1_gap, enter=h1_first)
stamp()
e(f'''v_add_f32 {vT[0]}, {vT[0]}, {vT[2]}
v_add_f32 {vT[1]}, {vT[1]}, {vT[3]}
v_fma_f32 {vT[0]}, -{vMean}, {vT[1]}, {vT[0]}
v_mul_f32 {vT[0]}, {vRstd}, {vT[0]}
v_cvt_pk_bf16_f32 {vT[0]}, {vT[0]}, {vT[0]}
ds_write_b16 {vQW}, {vT[0]}
s_waitcnt lgkmcnt(0)
s_barrier''')
for t in range(4):
    e(f's_mov_b64 exec, {mT[t]}')
    for s in range(2): e(f'ds_read_b128 {vAQ[16*s+4*t:16*s+4*t+4]}, {vQR} offset:{256*s}')
e('s_mov_b64 exec, -1')
for t in range(4):
    for s in range(2):
        e(f's_waitcnt lgkmcnt({7-2*t-s})\nv_smfmac_f32_16x16x64_bf16 {vD[0:4]}, {vAQ[16*s+4*t:16*s+4*t+4]}, {aK[16*t+8*s:16*t+8*s+8]}, {vIdx}')
p0, p1 = vP[0], vP[1]
e(f'''v_add_f32 {p0}, {vD[0]}, {vD[1]}
v_add_f32 {p1}, {vD[2]}, {vD[3]}
v_mul_f32 {p0}, {fl(CSC)}, {p0}
v_mul_f32 {p1}, {fl(CSC)}, {p1}
v_max_f32_dpp {vT[0]}, {p0}, {p0} row_ror:1 {DPP}
v_max_f32_dpp {vT[1]}, {p1}, {p1} row_ror:1 {DPP}''')
fill = [f'v_mov_b32 {vD[i]}, 0' for i in range(4)]
red = wave_reduce('v_max_f32', [vT[0], vT[1]], start=1)
for i in range(0, len(red), 2):
    if fill: e(fill.pop(0))
    e(red[i]); e(red[i+1])
e(f'''v_readlane_b32 {sM0}, {vT[0]}, 63
v_readlane_b32 {sM1}, {vT[1]}, 63
v_subrev_f32 {p0}, {sM0}, {p0}
v_subrev_f32 {p1}, {sM1}, {p1}
v_exp_f32 {p0}, {p0}
v_exp_f32 {p1}, {p1}
v_mov_b32 {vT[2]}, {sM0}
v_mov_b32 {vT[3]}, {sM1}
v_cvt_pk_bf16_f32 {vT[0]}, {p0}, {p1}
s_lshl_b32 {sT0}, {sW}, 3
s_add_u32 {sT0}, {sT0}, {MB}
ds_write_b16 {vPW}, {vT[0]}
ds_write_b16_d16_hi {vPW}, {vT[0]} offset:128
v_mov_b32 {vT[4]}, {sT0}
s_mov_b64 exec, 1
ds_write_b64 {vT[4]}, {vT[2:4]}
s_mov_b64 exec, -1''')
stamp()
def pv_head():
    e('s_waitcnt lgkmcnt(0)\ns_barrier')
    for u in range(4):
        e(f's_mov_b64 exec, {mT[u]}\nds_read_b128 {vAQ[4*u:4*u+4]}, {vQR} offset:{PB - QB + 256*u}')
    e(f'''s_mov_b64 exec, -1
v_mov_b32 {vT[4]}, {MB}
ds_read_b128 {vMM[0:4]}, {vT[4]}
ds_read_b128 {vMM[4:8]}, {vT[4]} offset:16
ds_read_b64 {vMM[8:10]}, {vMR}''')
def pv_meta():
    for s in wave_reduce('v_add_f32', [p0, p1]): e(s)
    e(f'''v_readlane_b32 {sT0}, {p0}, 63
v_readlane_b32 {sT1}, {p1}, 63
v_writelane_b32 {vT[2]}, {sM1}, 1
v_mov_b32 {vT[3]}, {sT0}
v_writelane_b32 {vT[3]}, {sT1}, 1''')
    mode_store(f'buffer_store_dwordx2 {vT[2:4]}, {vH2ms}, {rWS}, {sLoc} offen')
def pv_mm(u):
    for tau in range(2):
        e(f'v_smfmac_f32_16x16x64_bf16 {vD[4*tau:4*tau+4]}, {vAQ[4*u:4*u+4]}, {aV[16*u+8*tau:16*u+8*tau+8]}, {vIdx}')
def v_tr(u):
    for tau in range(2):
        for p in range(4):
            e(f'ds_read_b64_tr_b16 {aV[16*u+8*tau+2*p:16*u+8*tau+2*p+2]}, {vVR[tau]} offset:{u*16384 + (p>>1)*8192 + (p&1)*512}')
lp2 = lab('p2'); lno = lab('no'); ljoin = lab('pj')
e(f's_cmp_lg_u32 {sPass}, 0\ns_cbranch_scc0 {lno}')
pv_head(); pv_meta()
for u in range(4):
    e(f's_waitcnt lgkmcnt({6-u})'); pv_mm(u)
e(f'{ljoin}:')
nst[0] += 1
sv = (e.out, e.hist); e.out, e.hist = [], []
e(f'{lno}:\n' + (f's_bitcmp1_b32 {sRole}, 0' if OS else f's_cmp_lg_u32 {sRole}, 0') + f'\ns_cbranch_scc1 {lno}a')
dma_wo(0, opt['nwo'])
e(f's_waitcnt vmcnt({opt["nwo"]})\ns_branch {lno}b')
e(f'{lno}a:')
for role, nf, pitch in ((1, opt['nf1'], 9216), (2, opt['nf2'], 1152)):
    e(f's_cmp_lg_u32 {sRole}, {role}\ns_cbranch_scc1 {lno}r{role}')
    if nf: e(f's_mul_i32 {sT0}, {sW}, {8 * pitch}\ns_lshl_b32 {sT1}, {sW}, 10\ns_add_u32 m0, {sT1}, {TB}')
    for k in range(nf):
        e(f'buffer_load_dwordx4 {vTD}, {rT}, {sT0} offen{WNT} lds\ns_add_u32 {sT0}, {sT0}, {32 * pitch}\ns_add_u32 m0, m0, 4096')
    e(f's_waitcnt vmcnt({nf + (1 if opt["pfo"] and role == 2 else 0)})\ns_branch {lno}b\n{lno}r{role}:')
e(f's_waitcnt vmcnt({1 if opt["pfo"] else 0})\n{lno}b:')
nst[0] -= 1; stamp()
def wo_more(k0, n):
    if n <= k0: return
    l = lab('wm')
    e(f's_cmp_lg_u32 {sRole}, 0\ns_cbranch_scc1 {l}'); dma_wo(k0, n); e(f'{l}:')
pv_head(); v_tr(0); pv_meta()
w0 = opt['nwo']; wp = opt['wpv']
for u in range(4):
    e('s_waitcnt lgkmcnt(0)')
    if u < 3: v_tr(u + 1)
    pv_mm(u)
    if u < 2: wo_more(w0 + u * wp // 2, w0 + (u + 1) * wp // 2)
e(f's_branch {ljoin}')
cold.append(e.out); e.out, e.hist = sv
f0, f1 = vT[4], vT[5]
e(f'''s_waitcnt lgkmcnt(0)
v_max3_f32 {f0}, {vMM[0]}, {vMM[2]}, {vMM[4]}
v_max3_f32 {f1}, {vMM[1]}, {vMM[3]}, {vMM[5]}
v_max_f32 {f0}, {f0}, {vMM[6]}
v_max_f32 {f1}, {f1}, {vMM[7]}
v_sub_f32 {f0}, {vMM[8]}, {f0}
v_sub_f32 {f1}, {vMM[9]}, {f1}
v_exp_f32 {f0}, {f0}
v_exp_f32 {f1}, {f1}
v_add_f32 {vT[0]}, {vD[0]}, {vD[1]}
v_add_f32 {vT[1]}, {vD[2]}, {vD[3]}
v_add_f32 {vT[2]}, {vD[4]}, {vD[5]}
v_add_f32 {vT[3]}, {vD[6]}, {vD[7]}
v_mul_f32 {vT[0]}, {f0}, {vT[0]}
v_mul_f32 {vT[1]}, {f1}, {vT[1]}
v_mul_f32 {vT[2]}, {f0}, {vT[2]}
v_mul_f32 {vT[3]}, {f1}, {vT[3]}
v_permlane32_swap_b32 {vT[0]}, {vT[1]}
v_permlane32_swap_b32 {vT[2]}, {vT[3]}
v_add_f32 {vT[0]}, {vT[0]}, {vT[1]}
v_add_f32 {vT[2]}, {vT[2]}, {vT[3]}
v_permlane16_swap_b32 {vT[0]}, {vT[2]}
v_add_f32 {vT[0]}, {vT[0]}, {vT[2]}
v_cvt_pk_bf16_f32 {vT[0]}, {vT[0]}, {vT[0]}''')
mode_store(f'buffer_store_short {vT[0]}, {vH2os}, {rWS}, {sLoc} offen')
stamp()
base_st = nst[0]
zero(vD)
assert not OS
e(f's_cmp_lg_u32 {sRole}, 0\ns_cbranch_scc1 L_other')
slow.append(f'L_other:\ns_cmp_eq_u32 {sRole}, 2\ns_cbranch_scc1 L_f2\ns_cmp_eq_u32 {sRole}, 1\ns_cbranch_scc1 L_f1\ns_branch L_idle')

O_FIRST = True
mv, lv = vT[6], vT[7]
def me_load(M): e(f'buffer_load_dwordx2 {M[0:2]}, {vH2ml}, {rWS}, {sLoc} offen sc1')
def me_check(M): e(f'v_max_u32 {vT[0]}, {M[0]}, {M[1]}\nv_cmp_eq_u32 vcc, -1, {vT[0]}')
def me_use(M): e(f'v_mov_b32 {mv}, {M[0]}\nv_mov_b32 {lv}, {M[1]}')
e(f's_cmp_eq_u32 {sPass}, 0\ns_cbranch_scc1 L_o1\nL_o1b:')
stamp()
poll2('me', 1, me_load, me_check, vMM[0:2], vM2, use=me_use)
def o_loads(B):
    for k in range(4): e(f'buffer_load_dwordx4 {B[4*k:4*k+4]}, {vH2ol}, {rWS}, {sLoc} offen offset:{1024*k} sc1')
def o_gap():
    mc, ma = vT[4], vT[5]
    e(f'''v_max_f32_dpp {mc}, {mv}, {mv} quad_perm:[1,0,3,2] {DPP}
v_max_f32_dpp {mc}, {mc}, {mc} quad_perm:[2,3,0,1] {DPP}
v_max_f32_dpp {ma}, {mc}, {mc} row_ror:4 {DPP}''')
    for s in wave_reduce('v_max_f32', [ma], start=3): e(s)
    e(f'''v_readlane_b32 {sT0}, {ma}, 63
v_subrev_f32 {mv}, {sT0}, {mv}
v_subrev_f32 {mc}, {sT0}, {mc}
v_exp_f32 {mv}, {mv}
v_exp_f32 {mc}, {mc}
v_mul_f32 {lv}, {mv}, {lv}''')
    for s in wave_reduce('v_add_f32', [lv]): e(s)
    e(f'''v_readlane_b32 {sT0}, {lv}, 63
v_rcp_f32 {lv}, {sT0}
v_mul_f32 {mc}, {mc}, {lv}
v_cvt_pk_bf16_f32 {mc}, {mc}, {mc}''')
    for sg in range(2):
        for r in range(4):
            e(f'v_and_b32_dpp {vAC[4*sg+r]}, {mc}, {vMk1 if r & 1 else vMk0} row_newbcast:{8*sg + 4*(r>>1)} {DPP}')
def o_use(B):
    e(f'v_smfmac_f32_16x16x64_bf16 {vD[4:8]}, {vAC[0:4]}, {B[0:8]}, {vIdx2}\nv_smfmac_f32_16x16x64_bf16 {vD[4:8]}, {vAC[4:8]}, {B[8:16]}, {vIdx2}')
def o_check(B): sentinel_check([B[i] for i in range(16)])
def o_enter(lstart, ldone):
    sv = (e.out, e.hist); e.out, e.hist = [], []
    e('L_o1:')
    dma_wo(opt['nwo'] + opt['wpv'] // 2 * 2, NWO)
    if not opt['fast1']:
        tail_to_regs(NWO // 2, dst=aO); e('s_branch L_o1b')
    else:
        e(f's_waitcnt vmcnt({opt["fast1"]})')
        me_load(vMM); o_loads(vB)
        e('s_waitcnt vmcnt(5)\ns_barrier')
        tail_to_regs(NWO // 2, False, aO, False)
        e('s_waitcnt vmcnt(4)'); me_check(vMM)
        e('s_cbranch_vccnz L_o1c')
        me_use(vMM); o_gap()
        e('s_waitcnt vmcnt(0) lgkmcnt(0)'); o_check(vB)
        e(f's_cbranch_vccz {ldone}')
        e('L_o1c:\ns_waitcnt lgkmcnt(0)\ns_branch L_o1b')
    cold.append(e.out); e.out, e.hist = sv
poll2('o', 4, o_loads, o_check, vB, vB2, use=o_use, gap=o_gap, enter=o_enter)
stamp()
e(f'''v_cvt_pk_bf16_f32 {vT[0]}, {vD[4]}, {vD[5]}
v_cvt_pk_bf16_f32 {vT[1]}, {vD[6]}, {vD[7]}
s_mov_b32 exec_hi, 0
ds_write_b64 {vOW}, {vT[0:2]}
L_obar:
s_mov_b64 exec, {m33}
s_waitcnt lgkmcnt(0)
s_barrier''')
gemv(vOR, NWO // 2, aO)
push(vGo)
stamp()
if OS: e(f's_cmp_lg_u32 {sRole}, 0\ns_cbranch_scc1 L_f2')
def r_check(B):
    e(f'v_xor_b32 {vT[0]}, {sH}, {B[0]}')
    for k, s in ((1, sH1), (2, sH2), (3, sH3)): e(f'v_bitop3_b32 {vT[0]}, {B[k]}, {s}, {vT[0]} bitop3:0xbe')
    e(f'v_cmp_ne_u32_sdwa vcc, {vT[0]}, {vZero} src0_sel:BYTE_0 src1_sel:DWORD')
def pick_twin(tch=False):
    if not opt['cal']: return
    l = lab('tw')
    e(f'''s_cmp_lg_u32 {sPass}, 0
s_cbranch_scc1 {l}
s_add_u32 {sT0}, {sLoc}, {L_CAL}
buffer_load_dwordx2 {vT[6:8]}, {vH1l}, {rWS}, {sT0} offen sc1
s_waitcnt vmcnt(0)''')
    for x in wave_reduce('v_min_u32', [vT[6], vT[7]]): e(x)
    e(f'''v_readlane_b32 {sT0}, {vT[6]}, 63
v_readlane_b32 {sT1}, {vT[7]}, 63
s_cmp_lt_u32 {sT1}, {sT0}
s_cselect_b32 {sSel}, 8192, 0''')
    if tch: touch2()
    if tch and opt['touch'] and opt['tsplit']:
        e(f'''v_bfe_u32 {vT[0]}, {vL}, 2, 2
v_add_u32 {vT[0]}, 1, {vT[0]}
v_mul_u32_u24 {vT[0]}, {G_H6}, {vT[0]}
v_and_b32 {vT[1]}, 3, {vL}
v_readfirstlane_b32 {sT0}, {vRl}
v_lshl_add_u32 {vT[0]}, {vT[1]}, 7, {vT[0]}
s_add_u32 {sT0}, {sT0}, {sG}
s_add_u32 {sT0}, {sT0}, {sSel}
s_mov_b64 exec, 0xfff
buffer_load_dword {vDum[0]}, {vT[0]}, {rWS}, {sT0} offen sc1
s_mov_b64 exec, -1''')
    e(f'{l}:')
def reduce_stage(addr, wide):
    e(f's_add_u32 {sT2}, {sG}, {sSel}')
    z, c = vT[0], vT[1]
    def use(B):
        e(f'v_permlane32_swap_b32 {B[0]}, {B[2]}\nv_permlane32_swap_b32 {B[1]}, {B[3]}')
        if wide: e(f'v_add_f32 {B[0]}, {B[0]}, {B[2]}\nv_add_f32 {B[1]}, {B[1]}, {B[3]}')
        e(f'v_permlane16_swap_b32 {B[0]}, {B[1]}\nv_add_f32 {z}, {B[0]}, {B[1]}')
    poll2('r', 1, lambda B: e(f'buffer_load_dwordx4 {B[0:4]}, {addr}, {rWS}, {sT2} offen sc1'), r_check, vB[0:4], vB2[0:4], use=use)
    e(f'''v_add_f32_dpp {z}, {z}, {z} row_ror:4 {DPP}
v_add_f32_dpp {z}, {z}, {z} row_ror:8 {DPP}
v_cvt_pk_bf16_f32 {z}, {z}, {z}
v_lshlrev_b32 {z}, 16, {z}
v_add_f32 {z}, {z}, {vXr0}
v_mov_b32 {c}, {z}
v_cvt_pk_bf16_f32 {vXr0}, {z}, {z}
v_lshlrev_b32 {vXr0}, 16, {vXr0}
v_permlane16_swap_b32 {z}, {c}
v_cvt_pk_bf16_f32 {z}, {z}, {c}''')
pick_twin()
e(f's_add_u32 {sT3}, {sLoc}, {L_H4}')
reduce_stage(vRl, OS)
mode_store(f'buffer_store_dword {vT[0]}, {vRs}, {rWS}, {sT3} offen')
stamp()
pick_twin(True)
if opt['stamps']: e(f'v_writelane_b32 {vSt}, {sSel}, 29')
lr = lab('r2')
e(f'''s_add_u32 {sT3}, {sLoc}, {L_H7}
s_cmp_eq_u32 {sPass}, 0
s_cbranch_scc1 {lr}
s_and_b32 {sT0}, {sTile}, 7
s_cmp_lg_u32 {sT0}, {sA}
s_cbranch_scc1 L_exit''')
srd(rM, pout[0], pout[1], 1152)
e(f'{lr}:')
prewait(L_H5)
reduce_stage(vRl6, False)
e(f's_cmp_lg_u32 {sPass}, 0\ns_cbranch_scc1 L_final')
mode_store(f'buffer_store_dword {vT[0]}, {vRs}, {rWS}, {sT3} offen')
stamp()
e('s_branch L_next')
e('L_final:')
e(f'buffer_store_dword {vT[0]}, {vRs}, {rM}, 0 offen')
e(f'''s_or_b32 {sT0}, {sTile}, {sA}
s_cmp_lg_u32 {sT0}, 0
s_cbranch_scc1 L_fin2
v_mov_b32 {vT[1]}, {sE1}
s_mov_b64 exec, 1
buffer_store_dword {vT[1]}, off, {rWS}, 0 sc1
s_mov_b64 exec, -1
L_fin2:''')
if opt['stamps']:
    e(f's_waitcnt vmcnt(0)\ns_memrealtime {sSt}\ns_waitcnt lgkmcnt(0)\nv_writelane_b32 {vSt}, {sSt[0]}, 45')
e('s_branch L_exit')

nst[0] = base_st
e('L_f1:')
lp2 = lab('p2')
e(f's_cmp_lg_u32 {sPass}, 0\ns_cbranch_scc1 {lp2}')
touch2()
ffn_tail(9216, opt['g1'], opt['cap1'], opt['gate'], opt['nf1'])
tail_to_regs(9)
e(f'{lp2}:')
stamp()
prewait(L_H2O)
e(f's_add_u32 {sT2}, {sLoc}, {L_H4}')
poll_vec('x1')
stamp()
vec_to_lds()
gemv(vXR, 9, aT, fill=stats_list())
h, tt, nn, dd = vT[0], vT[1], vT[4], vT[5]
e(f'''v_add_f32 {h}, {vD[0]}, {vD[1]}
v_add_f32 {tt}, {vD[2]}, {vD[3]}
v_fma_f32 {h}, -{vMean}, {tt}, {h}
v_fma_f32 {h}, {vRstd}, {h}, {vBias}
v_mul_f32 {tt}, {fl(-1.4426950408889634)}, {h}
v_min_f32 {tt}, {tt}, -{tt}
v_exp_f32 {tt}, {tt}
v_cmp_lt_f32 vcc, 0, {h}
s_add_u32 {sT2}, {sLoc}, {L_H5}
v_mul_f32 {dd}, {tt}, {tt}
v_cndmask_b32 {nn}, {dd}, 1.0, vcc
v_cndmask_b32 {dd}, 1.0, {dd}, vcc
v_fma_f32 {nn}, 2.0, {tt}, {nn}
v_fma_f32 {dd}, 2.0, {dd}, {nn}
v_rcp_f32 {dd}, {dd}
v_mul_f32 {h}, {h}, {nn}
v_mul_f32 {h}, {h}, {dd}
v_cvt_pk_bf16_f32 {h}, {h}, {h}''')
mode_store(f'buffer_store_short {h}, {vFs}, {rWS}, {sT2} offen')
stamp()
e('s_branch L_next')

nst[0] = base_st + 3
e('L_f2:')
if OS: zero(vD[0:4])
lp2 = lab('p2')
e(f's_cmp_lg_u32 {sPass}, 0\ns_cbranch_scc1 {lp2}')
touch2()
ffn_tail(1152, opt['g2'], opt['cap2'], opt['gate2'], opt['nf2'])
tail_to_regs(9)
e(f'{lp2}:')
stamp()
prewait(L_H4)
e(f's_add_u32 {sT2}, {sLoc}, {L_H5}')
poll_vec('ac')
stamp()
vec_to_lds()
gemv(vXR, 9, aT)
push(vGs)
stamp()

e('s_branch L_next')
e('L_idle:')
e(f's_cmp_lg_u32 {sPass}, 0\ns_cbranch_scc1 L_exit')
if opt['touch'] and opt['both']:
    n3 = 288 if OS else 144; per = 44 if OS else 29
    e(f'''s_mul_i32 {sT0}, {sTile}, {per}
v_add_u32 {vT[0]}, {sT0}, {vL}
v_cmp_le_u32 vcc, {n3 + 144}, {vT[0]}
v_cndmask_b32 {vT[1]}, 0, 1, vcc
v_mul_u32_u24 {vT[2]}, {n3 + 144}, {vT[1]}
v_sub_u32 {vT[0]}, {vT[0]}, {vT[2]}
s_mul_i32 {sT0}, {sA}, {n3}
s_mul_i32 {sT1}, {sA}, 144
s_add_u32 {sT1}, {sT1}, {7 * n3}
v_mov_b32 {vT[2]}, {sT0}
v_mov_b32 {vT[3]}, {sT1}
v_cmp_le_u32 vcc, {n3}, {vT[0]}
v_cndmask_b32 {vT[2]}, {vT[2]}, {vT[3]}, vcc
v_add_lshl_u32 {vT[0]}, {vT[0]}, {vT[2]}, 7
v_lshrrev_b32 {vT[2]}, 13, {vT[0]}
v_lshl_add_u32 {vT[0]}, {vT[2]}, 13, {vT[0]}
v_mul_u32_u24 {vT[1]}, {G_PASS}, {vT[1]}
v_add_u32 {vT[0]}, {vT[0]}, {vT[1]}
s_add_u32 {sT0}, {sG}, 8192
s_bfm_b64 exec, {per}, 0
buffer_load_dword {vDum[0]}, {vT[0]}, {rWS}, {sG} offen sc1
buffer_load_dword {vDum[0]}, {vT[0]}, {rWS}, {sT0} offen sc1
s_mov_b64 exec, -1''')
if opt['pf3'] or opt['pf1']:
    e(f'''s_mul_i32 {sT0}, {sA}, 1152
s_add_u32 {rM[0]}, {pw1[0]}, {sT0}
s_addc_u32 {rM[1]}, {pw1[1]}, 0
s_mov_b32 {rM[2]}, {575*9216+1152}''')
if opt['pf3']:
    rows = opt['pf3']; per = (rows + 19) // 20
    e(f'''s_lshr_b32 {sT0}, {rM[0]}, 7
s_sub_u32 {sT0}, 3, {sT0}
s_and_b32 {sT0}, {sT0}, 7
s_lshl_b32 {sT0}, {sT0}, 7
s_mul_i32 {sT1}, {sTile}, {per}
s_add_u32 {sT1}, {sT1}, {576 - rows}
v_and_b32 {vT[0]}, 31, {vL}
v_add_u32 {vT[1]}, {sT1}, {vT[0]}
v_mul_u32_u24 {vT[1]}, 9216, {vT[1]}
v_lshrrev_b32 {vT[2]}, 5, {vL}
v_lshl_add_u32 {vT[1]}, {vT[2]}, 10, {vT[1]}
s_cmp_eq_u32 {sT0}, 0
s_cselect_b32 exec_hi, {(1 << per) - 1}, 0
s_mov_b32 exec_lo, {(1 << per) - 1}
buffer_load_dword {vDum[0]}, {vT[1]}, {rM}, {sT0} offen{PFNT}
s_mov_b64 exec, -1''')
if opt['pf1']:
    rows = opt['pf1']; n = (rows * 9 + 1279) // 1280
    e(f'v_lshl_add_u32 {vT[0]}, {sTile}, 6, {vL}')
    for k in range(n):
        e(f'''v_mul_u32_u24 {vT[1]}, 7282, {vT[0]}
v_lshrrev_b32 {vT[1]}, 16, {vT[1]}
v_mul_u32_u24 {vT[2]}, 9, {vT[1]}
v_sub_u32 {vT[2]}, {vT[0]}, {vT[2]}
v_add_u32 {vT[1]}, {576 - rows}, {vT[1]}
v_mul_u32_u24 {vT[1]}, 9216, {vT[1]}
v_lshl_add_u32 {vT[1]}, {vT[2]}, 7, {vT[1]}
buffer_load_dword {vDum[0]}, {vT[1]}, {rM}, 0 offen{PFNT}
v_add_u32 {vT[0]}, 1280, {vT[0]}''')
touch2()
if opt['cal']:
    e('s_waitcnt lgkmcnt(0)')
    for c in (0, 1, 0, 1): cal_sample(c)
    e(f'''v_mov_b32 {vT[0]}, {sCa}
v_mov_b32 {vT[1]}, {sCb}
s_lshl_b32 {sT0}, {sTile}, 3
s_add_u32 {sT0}, {sT0}, {sLoc}
s_add_u32 {sT0}, {sT0}, {L_CAL}
s_mov_b64 exec, 1
buffer_store_dwordx2 {vT[0:2]}, off, {rWS}, {sT0} sc1
s_mov_b64 exec, -1''')
if opt['touch'] and opt['tsplit']:
    e(f'''s_lshl_b32 {sT0}, {sTile}, 3
s_mul_i32 {sT1}, {sA}, 144
s_add_u32 {sT0}, {sT0}, {sT1}
v_add_lshl_u32 {vT[0]}, {vL}, {sT0}, 7
v_lshrrev_b32 {vT[2]}, 13, {vT[0]}
v_lshl_add_u32 {vT[0]}, {vT[2]}, 13, {vT[0]}
s_cmp_lt_u32 {sCb}, {sCa}
s_cselect_b32 {sT0}, 8192, 0
s_add_u32 {sT0}, {sT0}, {sG}
s_cmp_lt_u32 {sTile}, 18
s_cselect_b64 exec, 0xff, 0
s_cbranch_execz L_not
buffer_load_dword {vDum[0]}, {vT[0]}, {rWS}, {sT0} offen sc1
L_not:
s_mov_b64 exec, -1''')
if opt['touch'] and opt['cal'] and not opt['both'] and not opt['tsplit']:
    n3 = 288 if OS else 144; per = 44 if OS else 29
    e(f'''s_mul_i32 {sT0}, {sTile}, {per}
v_add_u32 {vT[0]}, {sT0}, {vL}
v_cmp_le_u32 vcc, {n3 + 144}, {vT[0]}
v_cndmask_b32 {vT[1]}, 0, 1, vcc
v_mul_u32_u24 {vT[2]}, {n3 + 144}, {vT[1]}
v_sub_u32 {vT[0]}, {vT[0]}, {vT[2]}
s_mul_i32 {sT0}, {sA}, {n3}
s_mul_i32 {sT1}, {sA}, 144
s_add_u32 {sT1}, {sT1}, {7 * n3}
v_mov_b32 {vT[2]}, {sT0}
v_mov_b32 {vT[3]}, {sT1}
v_cmp_le_u32 vcc, {n3}, {vT[0]}
v_cndmask_b32 {vT[2]}, {vT[2]}, {vT[3]}, vcc
v_add_lshl_u32 {vT[0]}, {vT[0]}, {vT[2]}, 7
v_lshrrev_b32 {vT[2]}, 13, {vT[0]}
v_lshl_add_u32 {vT[0]}, {vT[2]}, 13, {vT[0]}
v_mul_u32_u24 {vT[1]}, {G_PASS}, {vT[1]}
v_add_u32 {vT[0]}, {vT[0]}, {vT[1]}
s_cmp_lt_u32 {sCb}, {sCa}
s_cselect_b32 {sT0}, 8192, 0
s_add_u32 {sT0}, {sT0}, {sG}
s_bfm_b64 exec, {per}, 0
buffer_load_dword {vDum[0]}, {vT[0]}, {rWS}, {sT0} offen sc1
s_mov_b64 exec, -1''')
e('L_next:')
e(f'''s_cmp_lg_u32 {sPass}, 0
s_cbranch_scc1 L_exit
s_mov_b32 {sPass}, 1
s_add_u32 {sLoc}, {sLoc}, {LOC_PASS}
s_add_u32 {sH1s}, {sH1s}, {H1_PASS}
s_add_u32 {sH1l}, {sH1l}, {H1_PASS}
s_add_u32 {sG}, {sG}, {G_PASS}
s_branch L_top''')
for c in cold: e.out += c
e.hist = []
for b in slow: e(b)
e('L_exit:')
if opt['stamps']:
    e(f'''s_lshl2_add_u32 {sT0}, s2, {sW}
s_lshl_b32 {sT0}, {sT0}, 8
s_add_u32 {sT0}, {sT0}, {WS_STAMP}
v_writelane_b32 {vSt}, {sSt0[0]}, 30
v_writelane_b32 {vSt}, {sSpin}, 31
v_writelane_b32 {vSt}, {sMode}, 63
v_lshlrev_b32 {vT[0]}, 2, {vL}
buffer_store_dword {vSt}, {vT[0]}, {rWS}, {sT0} offen''')
e('L_end:\ns_endpgm')
acc = (V.next + 3) // 4 * 4
e.raw(f'''.section .rodata,"a"
.p2align 6
.amdhsa_kernel {NAME}_kernel
  .amdhsa_next_free_vgpr {acc + A.next}
  .amdhsa_next_free_sgpr 102
  .amdhsa_accum_offset {acc}
  .amdhsa_group_segment_fixed_size 0
  .amdhsa_kernarg_size 96
  .amdhsa_user_sgpr_count 2
  .amdhsa_user_sgpr_kernarg_segment_ptr 1
  .amdhsa_system_sgpr_workgroup_id_x 1
.end_amdhsa_kernel''')
open(sys.argv[1], 'w').write(e.text())
print('vgpr', V.next, 'agpr', A.next, 'sgpr', S.next, 'pads', e.npad, file=sys.stderr)
```
